```python
import torch

def _softmax(x, axis=-1):
    return torch.softmax(x, dim=axis)
def _gelu(x):
    return torch.nn.functional.gelu(x, approximate="tanh")
def _silu(x):
    return torch.nn.functional.silu(x)
def _sigmoid(x):
    return torch.sigmoid(x)
def _layernorm(x, axis=-1, eps=1e-5):
    m = x.mean(dim=axis, keepdim=True)
    v = x.var(dim=axis, keepdim=True, unbiased=False)
    return (x - m) / torch.sqrt(v + eps)
def _scatter_add(tgt, idx, src, axis=0):
    return tgt.clone().index_add_(axis, idx, src)
def _segment_sum(src, seg, n):
    out = torch.zeros((n,) + src.shape[1:], dtype=src.dtype)
    return out.index_add_(0, seg, src)
def _pad(x, pw):
    flat = tuple(v for pair in reversed(pw) for v in pair)
    return torch.nn.functional.pad(x, flat)

kernel_name = 'recurrent_scan__sliding_local_dilated__glu_gated_reglu__prompt'

def setup_inputs():

    _w = (lambda a: (lambda t: t.to(torch.bfloat16) if t.is_floating_point() else t)(torch.as_tensor(a)))
    def _A_setup():
        B, S, D = 1, 2048, 512
        return {
            "x": _w((lambda *s: torch.randn(*s, dtype=torch.bfloat16) * 0.05)(B, S, D)),
            "wqkv": _w((lambda *s: torch.randn(*s, dtype=torch.bfloat16) * 0.2)(D, 3 * D)),
            "wo": _w((lambda *s: torch.randn(*s, dtype=torch.bfloat16) * 0.2)(D, D)),
        }
    _A_in = _A_setup()

    def _B_setup():
        B, S, D, F = 1, 2048, 512, 1792
        return {
            "x": _w((lambda *s: torch.randn(*s, dtype=torch.bfloat16) * 0.05)(B, S, D)),
            "W_gate": _w((lambda *s: torch.randn(*s, dtype=torch.bfloat16) * 0.1)(D, F) * (2.0 / D) ** 0.5),
            "W_up": _w((lambda *s: torch.randn(*s, dtype=torch.bfloat16) * 0.1)(D, F) * (2.0 / D) ** 0.5),
            "W_down": _w((lambda *s: torch.randn(*s, dtype=torch.bfloat16) * 0.1)(F, D) * (1.0 / F) ** 0.5),
        }
    _B_in = _B_setup()

    return {
        "A_x": _A_in["x"],
        "A_wqkv": _A_in["wqkv"],
        "A_wo": _A_in["wo"],
        "B_x": _B_in["x"],
        "B_W_gate": _B_in["W_gate"],
        "B_W_up": _B_in["W_up"],
        "B_W_down": _B_in["W_down"],
    }

def reference(A_x, A_wqkv, A_wo, B_x, B_W_gate, B_W_up, B_W_down):
    def _A_ref(x, wqkv, wo):
        B, S, D = x.shape
        H = 32; Dh = D // H
        W, dil = 8, 2
        qkv = (lambda x, *d: x.permute(*d))((x @ wqkv).reshape(B, S, 3, H, Dh), 2, 0, 3, 1, 4)
        q, k, v = qkv[0], qkv[1], qkv[2]
        scale = Dh ** -0.5
        pos = torch.arange(S)
        off = torch.arange(W) * dil
        idx = pos[:, None] - off[None, :]
        mask = idx >= 0
        idx_c = torch.where(mask, idx, 0).reshape(-1)
        kg = k[:, :, idx_c, :].reshape(B, H, S, W, Dh)
        vg = v[:, :, idx_c, :].reshape(B, H, S, W, Dh)
        logits = torch.einsum("bhsd,bhswd->bhsw", q, kg) * scale
        logits = torch.where(mask[None, None, :, :], logits, -1e9)
        attn = _softmax(logits, axis=-1)
        o = torch.einsum("bhsw,bhswd->bhsd", attn, vg)
        return (lambda x, *d: x.permute(*d))(o, 0, 2, 1, 3).reshape(B, S, D) @ wo

    def _B_ref(x, W_gate, W_up, W_down):
        gate = torch.einsum("bsd,df->bsf", x, W_gate)
        up = torch.einsum("bsd,df->bsf", x, W_up)
        gate = gate * (lambda x, dt: x.to(dt))(gate > 0, gate.dtype)
        h = gate * up
        return torch.einsum("bsf,fd->bsd", h, W_down)

    x = A_x
    xn = _layernorm(x, axis=-1)
    s = _A_ref(xn, A_wqkv, A_wo)
    g = _silu(_B_ref(xn, B_W_gate, B_W_up, B_W_down))
    return x + s * g
```

```python
import re

TRANS = ("v_exp_f32", "v_log_f32", "v_rcp_f32", "v_rsq_f32", "v_sqrt_f32", "v_sin_f32", "v_cos_f32")

def parse_regs(tok):
    tok = tok.strip()
    m = re.fullmatch(r"-?\|?([vas])(\d+)\|?", tok)
    if m:
        return [(m.group(1), int(m.group(2)))]
    m = re.fullmatch(r"-?\|?([vas])\[(\d+):(\d+)\]\|?", tok)
    if m:
        return [(m.group(1), i) for i in range(int(m.group(2)), int(m.group(3)) + 1)]
    if tok == "vcc":
        return [("s", 106), ("s", 107)]
    if tok == "m0":
        return [("m", 0)]
    if tok == "exec":
        return [("e", 0)]
    return []

class Ins:
    __slots__ = ("text", "op", "dst", "src", "kind", "passes", "srcc", "ab", "dpp", "lds_dma", "store_wide", "isnop", "label")
    def __init__(self, text):
        self.text = text
        self.label = text.endswith(":")
        t = text.split(";")[0].strip()
        self.op = t.split()[0] if t else ""
        self.dst = []; self.src = []; self.kind = "other"; self.passes = 0; self.srcc = []; self.ab = []
        self.dpp = False; self.lds_dma = False; self.store_wide = False; self.isnop = 0
        if self.label or not t or t.startswith("."):
            self.kind = "none"; return
        rest = t[len(self.op):].strip()
        ops = [o.strip() for o in re.split(r",(?![^\[]*\])", rest)] if rest else []
        mods = ""
        if ops:
            parts = ops[-1].split()
            ops[-1] = parts[0] if parts else ""
            mods = " ".join(parts[1:])
        op = self.op
        R = [parse_regs(o) for o in ops]
        if op == "s_nop":
            self.kind = "salu"; self.isnop = int(ops[0]) + 1; return
        if op.startswith("v_mfma"):
            self.kind = "mfma"
            self.passes = 8 if "32x32x16" in op else (4 if "16x16x32" in op else 2)
            self.dst = R[0]; self.ab = R[1] + R[2]; self.srcc = R[3]; self.src = self.ab + self.srcc
        elif op.startswith("v_"):
            self.kind = "valu"
            self.dpp = any(k in mods for k in ("row_", "quad_perm", "wave_"))
            if op.startswith("v_permlane") and "swap" in op:
                self.dst = R[0] + R[1]; self.src = R[0] + R[1]
            elif op.startswith("v_cmp"):
                self.dst = R[0]; self.src = sum(R[1:], [])
            else:
                self.dst = R[0]; self.src = sum(R[1:], [])
                if op.startswith("v_dot2_"): self.ab = R[1] + R[2]
                if op.startswith("v_fmac") or op.startswith("v_dot2c") or self.dpp:
                    self.src = self.src + R[0]
                if op.startswith("v_cndmask") and len(ops) == 3:
                    self.src = self.src + [("s", 106), ("s", 107)]
                if op.startswith("v_add_co") or op.startswith("v_sub_co"):
                    self.dst = R[0] + R[1]; self.src = sum(R[2:], [])
        elif op.startswith("buffer_load") or op.startswith("global_load"):
            self.kind = "vmem"
            if " lds" in (" " + mods) or "_lds_" in op:
                self.lds_dma = True; self.src = sum(R, []) + [("m", 0)]
            else:
                self.dst = R[0]; self.src = sum(R[1:], [])
        elif op.startswith("buffer_store") or op.startswith("global_store"):
            self.kind = "vmem"; self.src = sum(R, [])
            self.store_wide = ("x4" in op or "x3" in op)
        elif op.startswith("ds_read"):
            self.kind = "ds"; self.dst = R[0]; self.src = sum(R[1:], [])
        elif op.startswith("ds_write"):
            self.kind = "ds"; self.src = sum(R, [])
        elif op.startswith("s_"):
            self.kind = "salu"
            if op.startswith("s_cmp") or op.startswith("s_cbranch") or op in ("s_barrier", "s_waitcnt", "s_endpgm", "s_branch", "s_setprio", "s_sleep"):
                self.src = sum(R, [])
            else:
                self.dst = R[0] if R else []; self.src = sum(R[1:], [])

def need_between(p, c):
    n = 0
    pd = set(p.dst)
    if p.kind == "valu":
        isdot = p.op.startswith("v_dot")
        if c.kind == "mfma" and pd & set(c.src): n = max(n, 3 if isdot else 2)
        if c.kind == "valu":
            rd = pd & set(c.src); wr = pd & set(c.dst)
            if isdot:
                if c.op == p.op:
                    if pd & set(c.ab): n = max(n, 3)
                elif rd or wr: n = max(n, 3)
            if p.op.startswith(TRANS) and rd: n = max(n, 1)
            if c.op.startswith("v_permlane") and rd: n = max(n, 2)
            if c.dpp and rd: n = max(n, 2)
            if c.op.startswith(("v_readlane", "v_readfirstlane")) and rd: n = max(n, 1)
            if any(k in ("s",) for k, _ in rd): n = max(n, 2)
            if "sdwa" in p.op or "op_sel" in p.text:
                if rd or wr: n = max(n, 1)
        if c.kind in ("vmem", "ds"):
            rd = pd & set(c.src)
            if any(k == "s" for k, _ in rd): n = max(n, 5)
            if isdot and (rd or pd & set(c.dst)): n = max(n, 3)
        if c.kind == "salu" and any(k == "s" for k, _ in pd & set(c.src)): n = max(n, 1)
    if p.kind == "mfma":
        w = {8: 12, 4: 8, 2: 5}[p.passes]
        if c.kind == "mfma":
            if pd & set(c.ab): n = max(n, w)
            if pd & set(c.srcc):
                if not (c.srcc == p.dst and c.passes == p.passes): n = max(n, w - 2)
                elif p.passes == 2: n = max(n, 2)
            elif pd & set(c.dst): n = max(n, w)
        elif c.kind in ("valu", "vmem", "ds"):
            if pd & (set(c.src) | set(c.dst)): n = max(n, w)
    if p.kind == "salu" and ("m", 0) in pd and c.lds_dma: n = max(n, 1)
    if p.kind == "vmem" and p.store_wide:
        if c.kind == "valu" and set(p.src) & set(c.dst): n = max(n, 2)
        elif set(p.src) & set(c.dst): n = max(n, 1)
    return n

class Asm:
    def __init__(self):
        self.ins = []
        self.lds_q = []
        self.vm_q = []
    def e(self, text):
        for line in text.strip().split("\n"):
            line = line.strip()
            if line: self.ins.append(line)
    def raw(self, text):
        self.ins.append(text)
    def ds(self, text, tag=None):
        self.e(text); self.lds_q.append(tag)
    def vm(self, text, tag=None):
        self.e(text); self.vm_q.append(tag)
    def _need(self, q, tags):
        idx = -1
        for i, t in enumerate(q):
            if t in tags: idx = i
        return idx
    def wait(self, lds=(), vm=(), lds_all=False, vm_all=False):
        parts = []
        if lds_all and self.lds_q:
            parts.append("lgkmcnt(0)"); self.lds_q = []
        elif lds:
            i = self._need(self.lds_q, set(lds))
            if i >= 0:
                n = len(self.lds_q) - 1 - i
                if n > 15: n = 15; i = len(self.lds_q) - 1 - 15
                parts.append(f"lgkmcnt({n})"); self.lds_q = self.lds_q[i + 1:]
        if vm_all and self.vm_q:
            parts.insert(0, "vmcnt(0)"); self.vm_q = []
        elif vm:
            i = self._need(self.vm_q, set(vm))
            if i >= 0:
                n = len(self.vm_q) - 1 - i
                assert n <= 63, n
                parts.insert(0, f"vmcnt({n})"); self.vm_q = self.vm_q[i + 1:]
        if parts: self.e("s_waitcnt " + " ".join(parts))
    def finish(self):
        out = []
        hist = []
        pos = 0
        nins = 0
        for text in self.ins:
            c = Ins(text)
            if c.kind == "none":
                out.append(text)
                continue
            need = 0
            for p, ppos in hist:
                d = pos - ppos - 1
                if d >= 12: continue
                n = need_between(p, c)
                if n > d: need = max(need, n - d)
            if need:
                out.append(f"s_nop {need - 1}"); pos += need; nins += 1
            out.append(text)
            hist.append((c, pos))
            pos += c.isnop if c.isnop else 1
            hist = [(p, pp) for p, pp in hist if pos - pp <= 14]
        return out
```

```python
import sys, os
sys.path.insert(0, os.path.dirname(os.path.abspath(__file__)))
from asmlib import Asm
NAME = "recurrent_scan__sliding_local_dilated__glu_gated_reglu__prompt"
OPT = dict(a.split("=") for a in sys.argv[2:] if "=" in a)
def opt(k, d): return type(d)(OPT.get(k, d))

def vr(b, n): return f"v[{b}:{b+n-1}]"
def ar(b, n): return f"a[{b}:{b+n-1}]"
def sr(b, n): return f"s[{b}:{b+n-1}]"

def sel_by_wave(A, dst, vals, swave):
    A.e(f"s_mov_b32 {dst}, {vals[0]}")
    for w in range(1, 4):
        if vals[w] != vals[0]:
            A.e(f"s_cmp_eq_u32 {swave}, {w}")
            A.e(f"s_cselect_b32 {dst}, {vals[w]}, {dst}")

def mk_srd(A, b, lo, hi, size):
    A.e(f"s_mov_b32 s{b}, {lo}\ns_mov_b32 s{b+1}, {hi}\ns_mov_b32 s{b+2}, {size}\ns_mov_b32 s{b+3}, 0x00020000")

def bf16r(A, x, tmp):
    A.e(f"v_cvt_pk_bf16_f32 {tmp}, {x}, {x}\nv_lshlrev_b32 {x}, 16, {tmp}")

def ln_final(A, vs, vq, vm, vrr, t):
    A.e(f"v_mul_f32 {vm}, 0x3b000000, {vs}")
    A.e(f"v_mul_f32 {vq}, 0x3b000000, {vq}")
    A.e(f"v_fma_f32 {vq}, -{vm}, {vm}, {vq}")
    A.e(f"v_max_f32 {vq}, 0, {vq}")
    bf16r(A, vm, t); bf16r(A, vq, t)
    A.e(f"v_add_f32 {vq}, 0x3727c5ac, {vq}")
    bf16r(A, vq, t)
    A.e(f"v_sqrt_f32 {vq}, {vq}")
    bf16r(A, vq, t)
    A.e(f"v_rcp_f32 {vrr}, {vq}")

def conv_ops(x, vm, t0, t1):
    return [f"v_lshlrev_b32 {t0}, 16, {x}", f"v_and_b32 {t1}, 0xffff0000, {x}",
            f"v_sub_f32 {t0}, {t0}, {vm}", f"v_sub_f32 {t1}, {t1}, {vm}",
            f"v_cvt_pk_bf16_f32 {x}, {t0}, {t1}"]

WS_SIZE = 64 * 144 * 1024
STAMP = opt("STAMP", 0); SELWG = opt("SELWG", 0)
class Stamps:
    def __init__(self, A): self.A = A; self.n = 0
    def __call__(self):
        if STAMP:
            self.A.e(f"s_memtime s[{76+2*self.n}:{77+2*self.n}]"); self.n += 1
            assert self.n <= 12
    def dump(self, lab):
        if not STAMP: return
        A = self.A
        A.e(f"s_cmp_lg_u32 s2, {SELWG}\ns_cbranch_scc1 {lab}\ns_cmp_lg_u32 s60, 0\ns_cbranch_scc1 {lab}")
        A.e("s_load_dwordx2 s[4:5], s[0:1], 64\ns_waitcnt lgkmcnt(0)")
        mk_srd(A, 8, "s4", "s5", 256)
        A.e("v_mov_b32 v2, 0")
        for i in range(self.n):
            A.e(f"s_sub_u32 s6, s{76+2*i}, s76\nv_mov_b32 v1, s6\nbuffer_store_dword v1, v2, s[8:11], 0 offen offset:{4*i}")

R = 6; SLOT = 20608; QOFF, GOFF, UOFF = 0, 6144, 13440
SB0 = 2 * SLOT; SBW = 24576
XH_OFF = SB0 + 4 * SBW; XH_STRIDE = 1040; RH_OFF = XH_OFF + 16 * XH_STRIDE; LDS1 = RH_OFF + 64
QS = 208
NB, PD = 6, 5
X0 = 64; FR = 36

def k1():
    A = Asm()
    e = A.e
    e("s_cmp_ge_u32 s2, 256\ns_cbranch_scc1 K1_END")
    ST = Stamps(A); ST()
    e("s_load_dwordx4 s[4:7], s[0:1], 0\ns_load_dwordx4 s[8:11], s[0:1], 32\ns_load_dwordx2 s[12:13], s[0:1], 72")
    e("v_and_b32 v1, 63, v0\nv_lshrrev_b32 v2, 6, v0")
    e("v_readfirstlane_b32 s60, v2")
    e("s_and_b32 s61, s2, 7\ns_lshr_b32 s62, s2, 3")
    e("s_lshr_b32 s63, s61, 2\ns_lshl_b32 s63, s63, 3\ns_and_b32 s64, s62, 7\ns_add_u32 s63, s63, s64")
    e("s_and_b32 s64, s61, 3\ns_lshl_b32 s64, s64, 2\ns_lshr_b32 s65, s62, 3\ns_add_u32 s64, s64, s65")
    e("s_lshl_b32 s65, s63, 7")
    e("s_lshl_b32 s66, s60, 5\ns_add_u32 s66, s66, s65\ns_lshl_b32 s66, s66, 10")
    e("v_lshrrev_b32 v2, 4, v1\nv_and_b32 v3, 15, v1")
    for i in range(4):
        e(f"v_add_u32 v4, {4*i}, v2\nv_xor_b32 v5, v3, v4\nv_lshlrev_b32 v4, 10, v4\nv_lshl_add_u32 v{220+i}, v5, 4, v4")
    e(f"s_mul_i32 s75, s60, {SBW}\ns_add_u32 s75, s75, {SB0}")
    e("s_sub_u32 s67, s65, 16")
    e("v_lshrrev_b32 v3, 4, v0\nv_add_u32 v3, s67, v3\nv_max_i32 v3, 0, v3\nv_and_b32 v4, 15, v0\nv_lshlrev_b32 v3, 10, v3\nv_lshl_add_u32 v3, v4, 4, v3")
    e("s_waitcnt lgkmcnt(0)")
    if STAMP == 2: ST()
    mk_srd(A, 16, "s4", "s5", 2048 * 1024)
    def xq_issue(q):
        for i in range(8):
            e(f"s_add_u32 m0, s75, {(q%3)*8192+i*1024}\ns_add_u32 s67, s66, {(i>>2)*16384+q*256}")
            A.vm(f"buffer_load_dwordx4 v{220+(i&3)}, s[16:19], s67 offen lds", ("x", q))
    for q in range(3): xq_issue(q)
    for t in range(4):
        A.vm(f"buffer_load_dwordx4 {vr(192+4*t,4)}, v3, s[16:19], 0 offen offset:{256*t}", ("hx", t))
    mk_srd(A, 20, "s12", "s13", WS_SIZE)
    items = [("Q", n) for n in range(6)] + [("G", n) for n in range(7)] + [("U", n) for n in range(7)]
    e("s_mul_i32 s68, s64, 64\ns_mul_i32 s69, s64, 224")
    for n in range(5):
        it = [items[4 * n + w] for w in range(4)]
        b = 24 + 4 * n
        ptr = {"Q": 6, "G": 8, "U": 10}
        sel_by_wave(A, f"s{b}", [f"s{ptr[t]}" for t, _ in it], "s60")
        sel_by_wave(A, f"s{b+1}", [f"s{ptr[t]+1}" for t, _ in it], "s60")
        sel_by_wave(A, f"s{b+2}", [512 * 3072 if t == "Q" else 512 * 3584 for t, _ in it], "s60")
        e(f"s_mov_b32 s{b+3}, 0x00020000")
        sel_by_wave(A, f"s{44+n}", ["s68" if t == "Q" else "s69" for t, _ in it], "s60")
        sel_by_wave(A, f"s{49+n}", [32 * 3072 if t == "Q" else 32 * 3584 for t, _ in it], "s60")
        sel_by_wave(A, f"s{54+n}", [{"Q": QOFF, "G": GOFF, "U": UOFF}[t] + 1024 * k for t, k in it], "s60")
        sel_by_wave(A, "s70", [64 * k for t, k in it], "s60")
        sel_by_wave(A, "s71", [5462 if t == "Q" else 4682 for t, _ in it], "s60")
        sel_by_wave(A, "s72", [12 if t == "Q" else 14 for t, _ in it], "s60")
        sel_by_wave(A, "s73", [3072 if t == "Q" else 3584 for t, _ in it], "s60")
        sel_by_wave(A, "s74", [1024 if t == "Q" else 64 for t, _ in it], "s60")
        e(f"""v_add_u32 v4, s70, v1
v_mul_u32_u24 v5, s71, v4
v_lshrrev_b32 v5, 16, v5
v_mul_u32_u24 v6, s72, v5
v_sub_u32 v6, v4, v6
v_mul_u32_u24 v7, s73, v5
v_lshrrev_b32 v8, 2, v6
v_mad_u32_u24 v7, v8, s74, v7
v_and_b32 v6, 3, v6
v_lshl_add_u32 v{10+n}, v6, 4, v7""")
    def dma_ops(c):
        ops = []
        for n in range(5):
            ops.append([f"s_add_u32 m0, s{54+n}, {(c % R) * SLOT}",
                        ("vm", f"buffer_load_dwordx4 v{10+n}, {sr(24+4*n,4)}, s{44+n} offen lds", ("w", c)),
                        f"s_add_u32 s{44+n}, s{44+n}, s{49+n}"])
        return ops
    def put(op):
        if isinstance(op, tuple):
            (A.vm if op[0] == "vm" else A.ds)(op[1], op[2])
        elif isinstance(op, list):
            for o in op: put(o)
        else: e(op)
    for c in range(2):
        put(dma_ops(c))
    e("v_and_b32 v4, 31, v1\nv_lshrrev_b32 v5, 5, v1\nv_and_b32 v6, 15, v1\nv_xor_b32 v5, v5, v6\nv_lshlrev_b32 v5, 4, v5\nv_lshlrev_b32 v4, 8, v4\nv_add_u32 v4, s75, v4")
    for tt in range(8):
        e(f"v_xor_b32 v6, {tt<<5}, v5\nv_add_u32 v{212+tt}, v4, v6")
    e("""v_lshrrev_b32 v4, 5, v1
v_bfe_u32 v5, v1, 4, 1
v_bfe_u32 v6, v1, 2, 2
v_and_b32 v7, 3, v1
v_lshl_add_u32 v8, v4, 3, v6""")
    e(f"v_mul_u32_u24 v15, 192, v8\nv_lshl_add_u32 v15, v5, 5, v15\nv_lshl_add_u32 v15, v7, 3, v15\nv_add_u32 v16, {3*SLOT}, v15")
    e(f"v_mul_u32_u24 v17, 224, v8\nv_mov_b32 v9, {UOFF-GOFF}\nv_mad_u32_u24 v17, v5, v9, v17\nv_lshl_add_u32 v17, v7, 3, v17\nv_add_u32 v17, {GOFF}, v17\nv_add_u32 v18, {3*SLOT}, v17")
    e(f"v_lshrrev_b32 v4, 4, v1\nv_lshl_add_u32 v8, v4, 3, v6\nv_mul_u32_u24 v19, 192, v8\nv_lshl_add_u32 v19, v7, 3, v19\ns_lshl_b32 s70, s60, 5\ns_add_u32 s70, s70, 64\nv_add_u32 v19, s70, v19\nv_add_u32 v20, {3*SLOT}, v19")
    e(f"v_and_b32 v8, 15, v1\nv_mul_u32_u24 v21, {XH_STRIDE}, v8\nv_lshl_add_u32 v21, v4, 4, v21\nv_add_u32 v21, {XH_OFF}, v21")
    e("v_mov_b32 v9, 0x3f803f80")
    for i in range(4): e(f"v_mov_b32 v{60+i}, 0")
    def xq_read(q):
        if STAMP == 2 and q == 0: ST()
        A.wait(vm=[("x", q)])
        if STAMP == 2: ST()
        for tt in range(8):
            A.ds(f"ds_read_b128 {vr(X0+32*q+4*tt,4)}, v{212+tt} offset:{(q%3)*8192}", ("xr", q, tt))
    def xq_stats(q):
        for tt in range(8):
            if tt % 2 == 0: A.wait(lds=[("xr", q, tt + 1)])
            for i in range(4):
                x = f"v{X0+32*q+4*tt+i}"
                e(f"v_dot2_f32_bf16 v{60+(i&1)}, {x}, v9, v{60+(i&1)}")
                e(f"v_dot2_f32_bf16 v{62+(i&1)}, {x}, {x}, v{62+(i&1)}")
    xq_read(0)
    A.wait(lds_all=True)
    xq_issue(3)
    xq_stats(0)
    xq_read(1); xq_stats(1)
    xq_read(2); xq_stats(2)
    A.wait(vm=[("hx", 3)])
    if STAMP == 2: ST()
    e("v_mov_b32 v208, 0\nv_mov_b32 v209, 0")
    for i in range(16):
        e(f"v_dot2_f32_bf16 v208, v{192+i}, v9, v208\nv_dot2_f32_bf16 v209, v{192+i}, v{192+i}, v209")
    for sh in (8, 4, 2, 1):
        e(f"v_add_f32_dpp v210, v208, v208 row_ror:{sh} row_mask:0xf bank_mask:0xf")
        e(f"v_add_f32_dpp v211, v209, v209 row_ror:{sh} row_mask:0xf bank_mask:0xf")
        e("v_mov_b32 v208, v210\nv_mov_b32 v209, v211")
    ln_final(A, "v208", "v209", "v210", "v211", "v24")
    for i in range(16):
        put(conv_ops(f"v{192+i}", "v210", f"v{24+2*(i&1)}", f"v{25+2*(i&1)}"))
    e(f"v_lshrrev_b32 v4, 4, v0\nv_and_b32 v5, 15, v0\nv_mul_u32_u24 v6, {XH_STRIDE}, v4\nv_lshl_add_u32 v6, v5, 4, v6\nv_lshlrev_b32 v7, 2, v4")
    e(f"v_add_u32 v6, {XH_OFF}, v6\nv_add_u32 v7, {RH_OFF}, v7")
    for t in range(4):
        A.ds(f"ds_write_b128 v6, {vr(192+4*t,4)} offset:{256*t}", "xh")
    A.ds("ds_write_b32 v7, v211", "xh")
    xq_read(3)
    A.wait(lds_all=True)
    e("s_barrier")
    ST()
    for c in range(2, R - 1):
        put(dma_ops(c))
    xq_stats(3)
    e("v_add_f32 v60, v60, v61\nv_add_f32 v62, v62, v63")
    e("v_mov_b32 v61, v60\nv_mov_b32 v63, v62")
    e("v_permlane32_swap_b32 v60, v61\nv_permlane32_swap_b32 v62, v63")
    e("v_add_f32 v60, v60, v61\nv_add_f32 v62, v62, v63")
    ln_final(A, "v60", "v62", "v22", "v23", "v24")
    for i in range(8):
        put(conv_ops(f"v{X0+i}", "v22", f"v{24+2*(i&1)}", f"v{25+2*(i&1)}"))
    NM = 320
    def frag_reads(m):
        c, r_ = divmod(m, 20); ks, b = divmod(r_, 10)
        s = c % R; buf = FR + 4 * (m % NB)
        ops = []
        for n in range(2):
            if b < 3:
                va = "v15" if s < 3 else "v16"; off = (s % 3) * SLOT + (16 * ks + 4 * n) * 192 + 64 * b
            else:
                va = "v17" if s < 3 else "v18"; off = (s % 3) * SLOT + (16 * ks + 4 * n) * 224 + 32 * (b - 3)
            ops.append(("ds", f"ds_read_b64_tr_b16 {vr(buf+2*n,2)}, {va} offset:{off}", ("f", m)))
        return ops
    def halo_reads(c):
        s = c % R; va = "v19" if s < 3 else "v20"
        return [("ds", f"ds_read_b64_tr_b16 {vr(28+2*n,2)}, {va} offset:{(s%3)*SLOT + 4*n*192}", ("h", c)) for n in range(2)] + \
               [("ds", f"ds_read_b128 {vr(32,4)}, v21 offset:{64*c}", ("h", c))]
    ST()
    for m in range(PD): put(frag_reads(m))
    for c in range(16):
        fill = []
        if c > 0:
            A.wait(vm=[("w", c + 1)])
            e("s_barrier")
        if c in (4, 8, 12) and STAMP == 1: ST()
        dm = dma_ops(c + R - 1) if (c + R - 1 < 16) else []
        cv = []
        if c < 15:
            for i in range(8):
                cv += conv_ops(f"v{X0+8*(c+1)+i}", "v22", f"v{24+2*(i&1)}", f"v{25+2*(i&1)}")
        for r_ in range(20):
            m = 20 * c + r_; ks, b = divmod(r_, 10)
            if m + PD < NM: put(frag_reads(m + PD))
            if r_ == 2: put(halo_reads(c))
            if r_ % 4 == 1 and dm: put(dm.pop(0))
            put(cv[2 * r_: 2 * r_ + 2])
            A.wait(lds=[("f", m)])
            cin = "0" if (c == 0 and ks == 0) else ar(16 * b, 16)
            e(f"v_mfma_f32_32x32x16_bf16 {ar(16*b,16)}, {vr(FR+4*(m%NB),4)}, {vr(X0+8*c+4*ks,4)}, {cin}")
            if r_ == 10:
                A.wait(lds=[("h", c)])
                e(f"v_mfma_f32_16x16x32_bf16 {ar(160,4)}, {vr(28,4)}, {vr(32,4)}, {'0' if c == 0 else ar(160,4)}")
        assert not dm
    ST()
    e(f"v_and_b32 v4, 15, v1\nv_lshlrev_b32 v4, 2, v4\nv_add_u32 v4, {RH_OFF}, v4")
    A.ds("ds_read_b32 v5, v4", "rh")
    e(f"s_lshl_b32 s70, s60, 5\ns_add_u32 s70, s70, 16\nv_and_b32 v6, 31, v1\nv_add_u32 v6, s70, v6\nv_mul_u32_u24 v6, {QS}, v6\nv_lshrrev_b32 v7, 5, v1\nv_lshl_add_u32 v6, v7, 3, v6")
    T = 64
    for b in range(3):
        for i in range(16): e(f"v_accvgpr_read_b32 v{T+16*b+i}, a{16*b+i}")
    for b in range(3):
        for i in range(16): e(f"v_mul_f32 v{T+16*b+i}, v23, v{T+16*b+i}")
        for i in range(8): e(f"v_cvt_pk_bf16_f32 v{T+48+8*b+i}, v{T+16*b+2*i}, v{T+16*b+2*i+1}")
        for g in range(4): A.ds(f"ds_write_b64 v6, {vr(T+48+8*b+2*g,2)} offset:{64*b+16*g}", "qkv")
    e(f"v_and_b32 v7, 15, v1\nv_mul_u32_u24 v7, {QS}, v7\nv_lshrrev_b32 v8, 4, v1\nv_lshl_add_u32 v7, v8, 3, v7\ns_lshl_b32 s70, s60, 5\ns_add_u32 s70, s70, 64\nv_add_u32 v7, s70, v7")
    for i in range(4): e(f"v_accvgpr_read_b32 v{28+i}, a{160+i}")
    A.wait(lds=["rh"])
    for i in range(4): e(f"v_mul_f32 v{28+i}, v5, v{28+i}")
    e("v_cvt_pk_bf16_f32 v32, v28, v29\nv_cvt_pk_bf16_f32 v33, v30, v31")
    A.ds("ds_write_b64 v7, v[32:33]", "qkv")
    e("v_mul_f32 v24, v23, v23\nv_lshlrev_b32 v8, 4, v1")
    e("s_lshl_b32 s71, s63, 2\ns_add_u32 s71, s71, s60\ns_mul_i32 s71, s71, 144\ns_mul_i32 s72, s64, 7\ns_add_u32 s71, s71, s72\ns_add_u32 s71, s71, 32\ns_lshl_b32 s71, s71, 10")
    for g in range(7):
        b = 3 + g; U = 128 + 24 * (g & 1)
        for i in range(16): e(f"v_accvgpr_read_b32 v{U+i}, a{16*b+i}")
        for i in range(8): e(f"v_max_f32 v{U+i}, 0, v{U+i}")
        for i in range(8): e(f"v_mul_f32 v{U+8+i}, v24, v{U+8+i}")
        for i in range(8): e(f"v_mul_f32 v{U+i}, v{U+i}, v{U+8+i}")
        for i in range(4): e(f"v_cvt_pk_bf16_f32 v{U+16+i}, v{U+2*i}, v{U+2*i+1}")
        if g == 4: e("s_add_u32 s71, s71, 4096")
        A.vm(f"buffer_store_dwordx4 {vr(U+16,4)}, v8, s[20:23], s71 offen offset:{1024*(g%4)}", "st")
    if STAMP == 1: ST()
    A.wait(lds_all=True)
    e("s_barrier")
    if STAMP == 1: ST()
    e(f"v_and_b32 v2, 127, v0\nv_lshrrev_b32 v3, 7, v0\nv_add_u32 v4, 2, v2\nv_mul_u32_u24 v4, {QS}, v4\nv_lshl_add_u32 v4, v3, 5, v4")
    Q = 64; K = 72; V = 136; L = 200; P = 216; O = 232
    for h in range(2): A.ds(f"ds_read_b128 {vr(Q+4*h,4)}, v4 offset:{14*QS+16*h}", "q")
    for w in range(8):
        for h in range(2): A.ds(f"ds_read_b128 {vr(K+8*w+4*h,4)}, v4 offset:{(14-2*w)*QS+64+16*h}", ("k", w))
    lw = []
    for w in range(8):
        A.wait(lds=["q", ("k", w)])
        for h in range(2): A.ds(f"ds_read_b128 {vr(V+8*w+4*h,4)}, v4 offset:{(14-2*w)*QS+128+16*h}", ("v", w))
        for i in range(8):
            e(f"v_dot2_f32_bf16 v{L+w}, v{Q+i}, v{K+8*w+i}, {'0' if i == 0 else f'v{L+w}'}")
    for w in range(0, 8, 2):
        e(f"v_cvt_pk_bf16_f32 v{L+8+w//2}, v{L+w}, v{L+w+1}")
    for w in range(0, 8, 2):
        e(f"v_lshlrev_b32 v{L+w}, 16, v{L+8+w//2}\nv_and_b32 v{L+w+1}, 0xffff0000, v{L+8+w//2}")
    e("s_cmp_lg_u32 s63, 0\ns_cbranch_scc1 K1_NOMASK")
    e("v_mov_b32 v5, 0xf149f2ca")
    for w in range(1, 8):
        e(f"v_cmp_gt_u32 vcc, {2*w}, v2")
        e(f"v_cndmask_b32 v{L+w}, v{L+w}, v5, vcc")
    e("s_nop 3")
    A.raw("K1_NOMASK:")
    e("s_nop 3")
    e(f"v_max3_f32 v5, v{L}, v{L+1}, v{L+2}\nv_max3_f32 v6, v{L+3}, v{L+4}, v{L+5}\nv_max3_f32 v5, v5, v{L+6}, v{L+7}\nv_max_f32 v5, v5, v6")
    e("v_mov_b32 v6, 0x3eb8aa3b")
    for w in range(8): e(f"v_sub_f32 v{L+w}, v{L+w}, v5")
    for w in range(8): e(f"v_mul_f32 v{L+w}, v6, v{L+w}")
    for w in range(8): e(f"v_exp_f32 v{L+w}, v{L+w}")
    e(f"v_add_f32 v5, v{L}, v{L+1}\nv_add_f32 v6, v{L+2}, v{L+3}\nv_add_f32 v7, v{L+4}, v{L+5}\nv_add_f32 v9, v{L+6}, v{L+7}")
    e("v_add_f32 v5, v5, v6\nv_add_f32 v7, v7, v9\nv_add_f32 v5, v5, v7\nv_rcp_f32 v5, v5")
    for w in range(8): e(f"v_mul_f32 v{L+w}, v5, v{L+w}")
    for w in range(8): e(f"v_cvt_pk_bf16_f32 v{P+2*w}, v{L+w}, 0\nv_cvt_pk_bf16_f32 v{P+2*w+1}, 0, v{L+w}")
    for w in range(8):
        A.wait(lds=[("v", w)])
        for i in range(8):
            for h in range(2):
                e(f"v_dot2_f32_bf16 v{O+2*i+h}, v{V+8*w+i}, v{P+2*w+h}, {'0' if w == 0 else f'v{O+2*i+h}'}")
    for hf in range(2):
        for n, i in enumerate([2 * hf, 2 * hf + 1, 4 + 2 * hf, 5 + 2 * hf]):
            e(f"v_cvt_pk_bf16_f32 v{Q+4*hf+n}, v{O+2*i}, v{O+2*i+1}")
    e(f"v_lshrrev_b32 v5, 5, v2\nv_mul_u32_u24 v5, 144, v5\nv_add_u32 v5, v5, v3\nv_lshlrev_b32 v5, 10, v5\nv_and_b32 v6, 31, v2\nv_lshl_add_u32 v5, v6, 4, v5")
    e("s_mul_i32 s71, s63, 576\ns_lshl_b32 s72, s64, 1\ns_add_u32 s71, s71, s72\ns_lshl_b32 s71, s71, 10")
    for hf in range(2):
        A.vm(f"buffer_store_dwordx4 {vr(Q+4*hf,4)}, v5, s[20:23], s71 offen offset:{512*hf}", "st")
    ST(); ST.dump("K1_END")
    A.raw("K1_END:")
    e("s_endpgm")
    return A.finish()

D2 = 12; WAREA = D2 * 2048 + 12288; LDS2 = 4 * WAREA
def k2():
    A = Asm(); e = A.e
    e("s_cmp_ge_u32 s2, 256\ns_cbranch_scc1 K2_END")
    ST = Stamps(A); ST()
    e("s_load_dwordx2 s[4:5], s[0:1], 16\ns_load_dwordx4 s[8:11], s[0:1], 48\ns_load_dwordx2 s[6:7], s[0:1], 0\ns_load_dwordx2 s[12:13], s[0:1], 72")
    e("v_and_b32 v1, 63, v0\nv_lshrrev_b32 v2, 6, v0")
    e("v_readfirstlane_b32 s60, v2")
    e("s_and_b32 s61, s2, 7\ns_lshr_b32 s62, s2, 3")
    e("s_lshl_b32 s63, s61, 2\ns_and_b32 s64, s62, 3\ns_add_u32 s63, s63, s64")
    e("s_lshr_b32 s64, s62, 2")
    e("s_and_b32 s65, s60, 1\ns_lshr_b32 s66, s60, 1")
    e("v_lshrrev_b32 v2, 3, v1\nv_and_b32 v3, 7, v1\nv_bfe_u32 v4, v1, 4, 1\nv_lshlrev_b32 v4, 2, v4\nv_xor_b32 v3, v3, v4\nv_lshlrev_b32 v2, 10, v2\nv_lshl_add_u32 v10, v3, 4, v2")
    e(f"v_lshlrev_b32 v11, 4, v1\ns_mul_i32 s70, s66, {144*1024}\ns_sub_u32 s71, {144*1024}, s70\nv_add_u32 v12, s71, v11\nv_add_u32 v11, s70, v11")
    e("s_lshl_b32 s70, s64, 7")
    e("s_lshl_b32 s40, s60, 17\ns_add_u32 s40, s40, s70")
    e(f"s_mul_i32 s41, s60, {448*1024}\ns_add_u32 s41, s41, s70")
    e(f"s_mul_i32 s42, s63, {288*1024}\ns_lshl_b32 s71, s60, 13\ns_add_u32 s43, s42, s71")
    e(f"s_mul_i32 s71, s60, {28*1024}\ns_add_u32 s44, s42, s71\ns_add_u32 s44, s44, {32*1024}")
    e(f"s_mul_i32 s45, s60, {WAREA}")
    e("s_waitcnt lgkmcnt(0)")
    mk_srd(A, 16, "s4", "s5", 512 * 1024)
    mk_srd(A, 20, "s8", "s9", 1792 * 1024)
    mk_srd(A, 24, "s12", "s13", WS_SIZE)
    AR = 64; WF = 32
    def put(op):
        if isinstance(op, tuple):
            (A.vm if op[0] == "vm" else A.ds)(op[1], op[2])
        elif isinstance(op, list):
            for o in op: put(o)
        else: e(op)
    def issue(n):
        s = n % D2
        ops = []
        srd, so, sa = ("s[16:19]", "s40", "s43") if n < 8 else ("s[20:23]", "s41", "s44")
        for h in range(2):
            ops += [f"s_add_u32 m0, s45, {s*2048+h*1024}",
                    ("vm", f"buffer_load_dwordx4 v10, {srd}, {so} offen lds", ("s", n)),
                    f"s_add_u32 {so}, {so}, 8192"]
        for h in range(2):
            ops.append(("vm", f"buffer_load_dwordx4 {vr(AR+8*s+4*h,4)}, v{11+h}, s[24:27], {sa} offen offset:{1024*(n%4)}", ("s", n)))
        if n % 4 == 3: ops.append(f"s_add_u32 {sa}, {sa}, 4096")
        return ops
    for n in range(D2 - 1): put(issue(n))
    mk_srd(A, 28, "s6", "s7", 2048 * 1024)
    mk_srd(A, 32, "s10", "s11", 2048 * 1024)
    e("v_and_b32 v2, 31, v1\nv_lshrrev_b32 v3, 5, v1\nv_lshlrev_b32 v2, 10, v2\nv_lshl_add_u32 v13, v3, 3, v2\nv_lshl_add_u32 v14, v3, 4, v2")
    e("s_lshl_b32 s46, s63, 1\ns_add_u32 s46, s46, s66\ns_lshl_b32 s46, s46, 15\ns_lshl_b32 s70, s64, 1\ns_add_u32 s70, s70, s65\ns_lshl_b32 s70, s70, 6\ns_add_u32 s46, s46, s70")
    e("""v_lshrrev_b32 v2, 5, v1
v_bfe_u32 v3, v1, 4, 1
v_bfe_u32 v4, v1, 2, 2
v_bfe_u32 v5, v1, 1, 1
v_and_b32 v6, 1, v1
v_lshl_add_u32 v7, v2, 2, v4
v_lshlrev_b32 v7, 7, v7
v_lshl_add_u32 v8, v3, 1, v5
v_lshrrev_b32 v4, 1, v4
v_xor_b32 v4, s65, v4
v_lshl_add_u32 v8, v4, 2, v8
v_lshl_add_u32 v7, v8, 4, v7
v_lshl_add_u32 v7, v6, 3, v7
v_add_u32 v15, s45, v7
v_xor_b32 v7, 64, v7
v_add_u32 v16, s45, v7""")
    e("v_lshlrev_b32 v17, 4, v1")
    for k in range(1, 4):
        e(f"s_xor_b32 s70, s60, {k}\ns_mul_i32 s70, s70, {WAREA}\nv_add_u32 v{17+k}, s70, v17")
    e("v_add_u32 v17, s45, v17")
    XR = 24
    def trs(n):
        s = n % D2; buf = WF + 8 * (n % 3)
        return [("ds", f"ds_read_b64_tr_b16 {vr(buf+4*cbk+2*h,2)}, v{15+cbk} offset:{s*2048+1024*h}", ("f", n)) for cbk in range(2) for h in range(2)]
    ST()
    A.wait(vm=[("s", 0)])
    ST()
    put(trs(0))
    NS = 36
    swr = []
    for n in range(NS):
        if n in (6, 12, 18, 24, 30): ST()
        if n + 1 < NS:
            A.wait(vm=[("s", n + 1)])
            put(trs(n + 1))
        if n + D2 - 1 < NS: put(issue(n + D2 - 1))
        if n == NS - D2 + 1:
            for g in range(4): A.vm(f"buffer_load_dwordx2 {vr(XR+2*g,2)}, v13, s[28:31], s46 offen offset:{16*g}", "x")
        if n == 9:
            swr = [("ds", f"ds_write_b128 v17, {ar(16*k+4*i,4)} offset:{D2*2048+(k-1)*4096+i*1024}", "sw") for k in range(1, 4) for i in range(4)]
        put(swr[:2]); swr = swr[2:]
        A.wait(lds=[("f", n)])
        s = n % D2; buf = WF + 8 * (n % 3)
        base = 0 if n < 8 else 64
        for k in range(4):
            cin = "0" if n in (0, 8) else ar(base + 16 * k, 16)
            e(f"v_mfma_f32_32x32x16_bf16 {ar(base+16*k,16)}, {vr(buf+4*(k&1),4)}, {vr(AR+8*s+4*(k>>1),4)}, {cin}")
    ST()
    for k in range(1, 4):
        for i in range(4):
            A.ds(f"ds_write_b128 v17, {ar(64+16*k+4*i,4)} offset:{(k-1)*4096+i*1024}", "ow")
    S = 64; O = 80; T = 96
    for i in range(16): e(f"v_accvgpr_read_b32 v{S+i}, a{i}")
    for i in range(16): e(f"v_accvgpr_read_b32 v{O+i}, a{64+i}")
    A.wait(lds_all=True)
    e("s_barrier")
    ST()
    for st in range(2):
        for k in range(1, 4):
            for i in range(4):
                A.ds(f"ds_read_b128 {vr(T+48*st+16*(k-1)+4*i,4)}, v{17+k} offset:{(D2*2048 if st == 0 else 0)+(k-1)*4096+i*1024}", ("r", st, k))
            if st == 1 and k == 1: pass
    for st in range(2):
        dst = S if st == 0 else O
        for k in range(1, 4):
            A.wait(lds=[("r", st, k)])
            for i in range(16): e(f"v_add_f32 v{dst+i}, v{dst+i}, v{T+48*st+16*(k-1)+i}")
    def rnd16(b, tmp):
        for i in range(8): e(f"v_cvt_pk_bf16_f32 v{tmp+i}, v{b+2*i}, v{b+2*i+1}")
        for i in range(8): e(f"v_lshlrev_b32 v{b+2*i}, 16, v{tmp+i}\nv_and_b32 v{b+2*i+1}, 0xffff0000, v{tmp+i}")
    rnd16(S, T); rnd16(O, T + 8)
    G = T + 16
    for i in range(16): e(f"v_mul_f32 v{G+i}, 0xbfb8aa3b, v{O+i}")
    for i in range(16): e(f"v_exp_f32 v{G+i}, v{G+i}")
    for i in range(16): e(f"v_add_f32 v{G+i}, 1.0, v{G+i}")
    for i in range(16): e(f"v_rcp_f32 v{G+i}, v{G+i}")
    for i in range(16): e(f"v_mul_f32 v{G+i}, v{G+i}, v{O+i}")
    rnd16(G, T)
    for i in range(16): e(f"v_mul_f32 v{S+i}, v{S+i}, v{G+i}")
    rnd16(S, T)
    A.wait(vm=["x"])
    for i in range(8): e(f"v_lshlrev_b32 v{O+2*i}, 16, v{XR+i}\nv_and_b32 v{O+2*i+1}, 0xffff0000, v{XR+i}")
    for i in range(16): e(f"v_add_f32 v{S+i}, v{S+i}, v{O+i}")
    for i in range(8): e(f"v_cvt_pk_bf16_f32 v{T+i}, v{S+2*i}, v{S+2*i+1}")
    for p in range(2):
        e(f"v_permlane32_swap_b32 v{T+4*p}, v{T+4*p+2}\nv_permlane32_swap_b32 v{T+4*p+1}, v{T+4*p+3}")
    for p in range(2):
        A.vm(f"buffer_store_dwordx4 {vr(T+4*p,4)}, v14, s[32:35], s46 offen offset:{32*p}", "st")
    ST(); ST.dump("K2_END")
    A.raw("K2_END:")
    e("s_endpgm")
    return A.finish()

def kdesc(name, nfv, acc):
    return f""".amdhsa_kernel {name}
  .amdhsa_next_free_vgpr {nfv}
  .amdhsa_next_free_sgpr 102
  .amdhsa_accum_offset {acc}
  .amdhsa_group_segment_fixed_size 0
  .amdhsa_kernarg_size 80
  .amdhsa_user_sgpr_count 2
  .amdhsa_user_sgpr_kernarg_segment_ptr 1
  .amdhsa_system_sgpr_workgroup_id_x 1
.end_amdhsa_kernel
"""

def main():
    out = []
    out.append(f"; @launch kernel=rs_k1_kernel grid=(256,1,1) block=(256,1,1) lds={LDS1}")
    out.append(f"; @launch kernel=rs_k2_kernel grid=(256,1,1) block=(256,1,1) lds={LDS2}")
    out.append('.amdgcn_target "amdgcn-amd-amdhsa--gfx950"\n.text')
    for nm, fn in (("rs_k1_kernel", k1), ("rs_k2_kernel", k2)):
        out.append(f".globl {nm}\n.p2align 8\n.type {nm},@function\n{nm}:")
        out += fn()
    out.append('.section .rodata,"a"\n.p2align 6')
    out.append(kdesc("rs_k1_kernel", 256 + 168, 256))
    out.append(".p2align 6")
    out.append(kdesc("rs_k2_kernel", 256 + 128, 256))
    open(sys.argv[1], "w").write("\n".join(out) + "\n")
main()
```

```python
import sys, os
sys.path.insert(0, os.path.dirname(os.path.abspath(__file__)))
from asmlib import Asm
NAME = "recurrent_scan__sliding_local_dilated__glu_gated_reglu__prompt"
OPT = dict(a.split("=") for a in sys.argv[2:] if "=" in a)
def opt(k, d): return type(d)(OPT.get(k, d))
def vr(b, n): return f"v[{b}:{b+n-1}]"
def sr(b, n): return f"s[{b}:{b+n-1}]"

STAMP = opt("STAMP", 0); SELWG = opt("SELWG", 0); SELW = opt("SELW", 0); TL = opt("TL", 0)
PDS = [opt("PD0", 7), opt("PD1", 7)]; BOFFS = [opt("BO0", 5), opt("BO1", 4)]; MF1 = opt("MF1", 1)
PREF = opt("PREF", 1); ADV = opt("ADV", 1)
PFC = [int(x) for x in opt("PFC", "0,2").split(",") if x != ""]; PFI = opt("PFI", 1)
PFN = len(PFC) * (3 - PFI)
sPFM, sPFO, sPFS = "s74", "s59", "s71"; vPF = 62
assert not (2 in PFC and 3 in PFC) and (not PFC or PFN in (4, 8))
STM = "sc0 sc1"

WSL = 22656; XSL = 18432
X2 = 0; W0 = 18432; W1 = W0 + WSL; X0 = W1 + WSL; W2_ = X0 + XSL; W3 = W2_ + WSL; X1 = W3 + WSL
MISC = X1 + XSL
CST = MISC; CNT = MISC + 1472
WSLOT = [W0, W1, W2_, W3]; XSLOT = [X0, X1, X2]
GO, UO, QO = 0, 8320, 16512
AREA = [16384 * i for i in range(7)] + [147456]
QKV = 114688; QS = 208
SCR = 147456
LDS_TOTAL = 163840
assert MISC == 145920
WS_STATS = 10 << 20; WS_CS = 11 << 20; WS_DUMMY = 12 << 20; WS_FLG = 13 << 20; FLS = opt('FLS', 7); WS_SIZE = 64 << 20

S_X, S_A, S_B, S_WS, S_DBG, S_W2 = 24, 28, 32, 36, 40, 44
sW, sI, sJ, sRB, sCB, sRG, sQ = "s60", "s61", "s62", "s63", "s64", "s65", "s66"
sA, sB, sXo = "s48", "s49", "s50"
sMA, sMB = "s51", "s52"
sXa, sXb, sXc = "s53", "s54", "s55"
sCH, sNX, sIT = "s56", "s57", "s58"
sT0, sT1, sT2, sT3 = "s67", "s68", "s69", "s70"
sSLOT, sCP = "s71", "s72"
sW2o, sAo, sCNT, sMSK = "s73", "s74", "s75", "s59"
vD = 2
vRA = 8
vB = 18
vBl = 22; vH = 60; vHl = 23
FR = 200
BF = 48
HF = 160
ACC = 64
HACC = 144
T = 168

class G:
    def __init__(self):
        self.A = Asm(); self.ns = 0
    def e(self, t): self.A.e(t)
    def put(self, op):
        A = self.A
        if isinstance(op, tuple): (A.vm if op[0] == "vm" else A.ds)(op[1], op[2])
        elif isinstance(op, list):
            for o in op: self.put(o)
        else: A.e(op)
    def lab(self, l): self.A.raw(l + ":")
    def srd(self, b, lo, size):
        self.e(f"s_mov_b32 s{b}, s{lo}\ns_mov_b32 s{b+1}, s{lo+1}\ns_mov_b32 s{b+2}, {size}\ns_mov_b32 s{b+3}, 0x00020000")
    def st(self, i):
        if STAMP: self.e(f"s_memtime s[{76+2*i}:{77+2*i}]"); self.ns = max(self.ns, i + 1)

def bf16r(g, x, tmp):
    g.e(f"v_cvt_pk_bf16_f32 {tmp}, {x}, {x}\nv_lshlrev_b32 {x}, 16, {tmp}")

def ln_final(g, vs, vq, vm, vrr, t):
    e = g.e
    e(f"v_mul_f32 {vm}, 0x3b000000, {vs}\nv_mul_f32 {vq}, 0x3b000000, {vq}")
    e(f"v_fma_f32 {vq}, -{vm}, {vm}, {vq}\nv_max_f32 {vq}, 0, {vq}")
    bf16r(g, vm, t); bf16r(g, vq, t)
    e(f"v_add_f32 {vq}, 0x3727c5ac, {vq}")
    bf16r(g, vq, t)
    e(f"v_sqrt_f32 {vq}, {vq}")
    bf16r(g, vq, t)
    e(f"v_rcp_f32 {vrr}, {vq}")

BLK = {0: ["Q0", "Q1", "Q2", "G0", "G1", "G2"], 1: ["G3", "G4", "G5", "G6", "G7"]}
def ra_idx(cg, name):
    if name[0] == "Q": return 3, 64 * int(name[1])
    b = int(name[1])
    return (b & 3), 128 * (b >> 2)

def dma_groups(cg):
    def wpart(slot):
        base = WSLOT[slot]
        if cg == 0:
            return [[f"s_add_u32 m0, {sMA}, {base+GO}", ("vm", f"buffer_load_dwordx4 v{vD}, {sr(S_A,4)}, {sA} offen lds", "d")],
                    [f"s_add_u32 m0, {sMA}, {base+GO+1024}", ("vm", f"buffer_load_dwordx4 v{vD+1}, {sr(S_A,4)}, {sA} offen lds", "d"),
                     f"s_add_u32 {sA}, {sA}, {32*3584*ADV}"],
                    [f"s_add_u32 m0, {sMB}, {base+QO}", ("vm", f"buffer_load_dwordx4 v{vD+2}, {sr(S_B,4)}, {sB} offen lds", "d")]]
        return [[f"s_add_u32 m0, {sMA}, {base+UO}", ("vm", f"buffer_load_dwordx4 v{vD}, {sr(S_A,4)}, {sA} offen lds", "d")],
                [f"s_add_u32 m0, {sMA}, {base+UO+1024}", ("vm", f"buffer_load_dwordx4 v{vD+1}, {sr(S_A,4)}, {sA} offen lds", "d"),
                 f"s_add_u32 {sA}, {sA}, {32*3584*ADV}"]]
    def half(slot, xs):
        base = WSLOT[slot]
        ops = ["s_mov_b32 exec_hi, 0"]
        if slot is not None:
            ops += [f"s_add_u32 m0, {sMB}, {base+QO+1024}", ("vm", f"buffer_load_dwordx4 v{vD+3}, {sr(S_B,4)}, {sB} offen lds", "d"),
                f"s_add_u32 {sB}, {sB}, {32*3072*ADV}"]
        if xs is not None:
            ops += [f"s_lshl_b32 {sT0}, {sRG}, 9\ns_add_u32 m0, {sT0}, {xs}", ("vm", f"buffer_load_dwordx4 v{vD+4}, {sr(S_X,4)}, {sXo} offen lds", "d"),
                    f"s_add_u32 {sXo}, {sXo}, {128*ADV}\ns_and_b32 {sXo}, {sXo}, 1023"]
        ops += ["s_mov_b64 exec, -1"]
        return ops
    def xpart(xs):
        u = []
        for n in range(4):
            o = [f"s_add_u32 {sT0}, {sMB}, {xs}" if n == 0 else None, f"s_add_u32 m0, {sT0}, {1024*n}",
                 ("vm", f"buffer_load_dwordx4 v{vD+2+n}, {sr(S_X,4)}, {sXo} offen lds", "d")]
            if n == 3: o.append(f"s_add_u32 {sXo}, {sXo}, {128*ADV}\ns_and_b32 {sXo}, {sXo}, 1023")
            u.append([x for x in o if x])
        return u
    return wpart, half, xpart

def phase1(g, cg):
    A = g.A; e = g.e; put = g.put
    blocks = BLK[cg]; NBLK = len(blocks); M = 2 * NBLK; PD = PDS[cg]; NB = PD + 1; BOFF = BOFFS[cg]
    wpart, half, xpart = dma_groups(cg)
    L = f"C{cg}_"
    e(f"v_lshrrev_b32 v8, 4, v1\nv_and_b32 v9, 15, v1\nv_lshlrev_b32 v10, 1, v8\nv_xor_b32 v9, v9, v10")
    e(f"v_mul_u32_u24 v10, 3584, v8\nv_lshl_add_u32 v{vD}, v9, 4, v10\nv_add_u32 v{vD+1}, {4*3584}, v{vD}")
    e(f"s_lshl_b32 {sT0}, {sQ}, 7\ns_lshl_b32 {sT1}, {sRG}, 3\ns_add_u32 {sT0}, {sT0}, {sT1}\ns_mul_i32 {sA}, {sT0}, 3584\ns_lshl_b32 {sT1}, {sCB}, 8\ns_add_u32 {sA}, {sA}, {sT1}")
    e(f"s_lshl_b32 {sMA}, {sRG}, 11\ns_lshl_b32 {sXo}, {sQ}, 8")
    e(f"s_cmp_lt_u32 {sCB}, 14\ns_cselect_b32 {sT2}, {512*3584}, 0")
    if cg == 0:
        e(f"s_mul_i32 {sB}, {sT0}, 3072\ns_lshl_b32 {sT1}, {sCB}, 6\ns_add_u32 {sB}, {sB}, {sT1}\ns_mul_i32 {sMB}, {sRG}, 1536")
        for n in range(2):
            if n == 0: e("v_mov_b32 v9, v1")
            else: e("v_add_u32 v9, 64, v1")
            e(f"""v_mul_u32_u24 v10, 43, v9
v_lshrrev_b32 v10, 9, v10
v_mul_u32_u24 v11, 12, v10
v_sub_u32 v11, v9, v11
v_mul_u32_u24 v10, 3072, v10
v_lshrrev_b32 v12, 2, v11
v_lshl_add_u32 v10, v12, 10, v10
v_and_b32 v11, 3, v11
v_lshl_add_u32 v{vD+2+n}, v11, 4, v10""")
        e(f"s_lshl_b32 {sT1}, {sRG}, 2\nv_lshrrev_b32 v9, 3, v1\nv_add_u32 v9, {sT1}, v9\nv_bfe_u32 v10, v9, 1, 3\nv_and_b32 v11, 7, v1\nv_xor_b32 v10, v10, v11")
        e(f"s_lshl_b32 {sT1}, {sRB}, 7\ns_sub_u32 {sT1}, {sT1}, 16\nv_add_u32 v9, {sT1}, v9\nv_max_i32 v9, 0, v9\nv_lshlrev_b32 v9, 10, v9\nv_lshl_add_u32 v{vD+4}, v10, 4, v9")
    else:
        e(f"s_lshl_b32 {sMB}, {sRG}, 12\ns_add_u32 {sMB}, {sMB}, 2048")
        e(f"s_lshl_b32 {sT1}, {sRB}, 7\ns_lshl_b32 {sT3}, {sRG}, 5\ns_add_u32 {sT1}, {sT1}, {sT3}")
        e(f"v_lshrrev_b32 v9, 3, v1\nv_add_u32 v9, {sT1}, v9\nv_and_b32 v10, 7, v1\nv_xor_b32 v10, v10, v8\nv_lshlrev_b32 v9, 10, v9\nv_lshl_add_u32 v{vD+2}, v10, 4, v9")
        e(f"v_xor_b32 v9, 64, v{vD+2}\nv_add_u32 v{vD+3}, 8192, v9\nv_add_u32 v{vD+4}, 16384, v{vD+2}\nv_add_u32 v{vD+5}, 24576, v9")
    e("s_waitcnt lgkmcnt(0)")
    g.srd(S_X, 4, 2048 * 1024)
    e(f"s_mov_b32 s{S_A}, s{12+2*cg}\ns_mov_b32 s{S_A+1}, s{13+2*cg}\ns_mov_b32 s{S_A+2}, {sT2}\ns_mov_b32 s{S_A+3}, 0x00020000")
    if cg == 0: g.srd(S_B, 6, 512 * 3072)
    g.st(1)
    def group(slot, xs):
        u = []
        if cg == 0:
            if slot is not None: u += wpart(slot)
            u.append(half(slot, xs))
        else:
            if xs is not None: u += xpart(xs)
            if slot is not None: u += wpart(slot)
        return u
    put(group(0, X0))
    n_g4 = len(A.vm_q)
    e(f"v_lshlrev_b32 v9, 4, v1\ns_lshl_b32 {sT1}, s2, 3\ns_add_u32 {sT1}, {sT1}, {sW}\ns_lshl_b32 {sT2}, {sT1}, 10")
    A.vm(f"buffer_load_dwordx4 {vr(T,4)}, v9, {sr(S_X,4)}, {sT2} offen", "sx")
    put(group(1, X1)); put(group(2, None)); put(group(3, X2))
    if PREF:
        e(f"s_getpc_b64 s[72:73]")
        g.lab(L + "PC")
        e(f"s_sub_u32 s72, s72, {L}PC-{NAME}_kernel\ns_subb_u32 s73, s73, 0")
    g.srd(S_WS, 22, WS_SIZE)
    g.srd(S_DBG, 20, 256)
    if PFC:
        n1 = 64 // PFN
        e(f"s_mul_i32 {sT0}, {sJ}, 448\ns_lshl_b32 {sT3}, {sW}, 6\ns_add_u32 {sT0}, {sT0}, {sT3}\ns_lshl_b32 {sT3}, {sJ}, 7\ns_mov_b32 {sPFS}, {n1*128}\ns_mov_b32 s{S_W2+2}, {1792*1024}\ns_cmp_eq_u32 {sW}, 7")
        e(f"s_cselect_b32 {sT0}, {sT3}, {sT0}\ns_cselect_b32 {sPFS}, {2*n1*128}, {sPFS}")
        e(f"s_cselect_b32 s{S_W2}, s8, s16\ns_cselect_b32 s{S_W2+1}, s9, s17\ns_cselect_b32 s{S_W2+2}, {512*1024}, s{S_W2+2}\ns_mov_b32 s{S_W2+3}, 0x00020000")
        e(f"v_add_u32 v{vPF}, {sT0}, v1\nv_lshlrev_b32 v{vPF}, 7, v{vPF}\ns_mov_b32 {sPFM}, 1\ns_and_b32 {sPFO}, {sI}, {PFN-1}")
    e("""v_lshrrev_b32 v9, 5, v1
v_bfe_u32 v10, v1, 4, 1
v_bfe_u32 v11, v1, 2, 2
v_and_b32 v12, 3, v1
v_lshl_add_u32 v13, v9, 3, v11""")
    e(f"v_lshlrev_b32 v14, 8, v13\nv_mov_b32 v15, {UO}\nv_mad_u32_u24 v14, v10, v15, v14\nv_lshl_add_u32 v14, v12, 3, v14\nv_add_u32 v14, {W0+GO}, v14")
    los = [0, 1, 2] if cg == 0 else [0, 1, 2, 3]
    tmpv = T + 8
    for lo in los:
        e(f"v_xor_b32 v15, {lo}, v11\nv_lshl_add_u32 v{tmpv+lo}, v15, 5, v14")
    if cg == 0:
        e(f"v_mul_u32_u24 v15, 192, v13\nv_lshl_add_u32 v15, v10, 5, v15\nv_lshl_add_u32 v15, v12, 3, v15\nv_add_u32 v{tmpv+3}, {W0+QO}, v15")
    else:
        e(f"v_lshl_add_u32 v15, v8, 3, v11\nv_mul_u32_u24 v15, 192, v15\nv_lshl_add_u32 v15, v12, 3, v15\ns_lshl_b32 {sT3}, {sRG}, 5\ns_add_u32 {sT3}, {sT3}, {W0+QO+64}\nv_add_u32 v{tmpv+4}, {sT3}, v15")
        e(f"v_and_b32 v15, 15, v1\nv_lshrrev_b32 v16, 1, v15\nv_xor_b32 v16, v16, v8\nv_lshlrev_b32 v15, 7, v15\nv_lshl_add_u32 v{vHl}, v16, 4, v15")
    e(f"v_and_b32 v15, 31, v1\nv_bfe_u32 v16, v1, 1, 3\nv_xor_b32 v16, v16, v9\ns_lshl_b32 {sT3}, {sRG}, 5\ns_add_u32 {sT3}, {sT3}, 16\nv_add_u32 v15, {sT3}, v15\nv_lshlrev_b32 v15, 7, v15\nv_lshl_add_u32 v{vBl}, v16, 4, v15")
    nra = 4 if cg == 0 else 5
    for i in range(nra):
        e(f"v_mov_b32 v{vRA+i}, v{tmpv+i}\nv_add_u32 v{vRA+5+i}, {W2_-W0}, v{tmpv+i}")
    e(f"s_mov_b32 {sXa}, {X0}\ns_mov_b32 {sXb}, {X1}\ns_mov_b32 {sXc}, {X2}\ns_mov_b32 {sCH}, 0\ns_and_b32 {sNX}, {sRB}, 3\ns_mov_b32 {sIT}, 0\ns_mov_b32 {sCNT}, 0")
    def xaddr():
        ops = [f"v_add_u32 v{vB}, {sXa}, v{vBl}"] + [f"v_xor_b32 v{vB+i}, {32*i}, v{vB}" for i in range(1, 4)]
        if cg == 1: ops += [f"v_add_u32 v{vH}, {sXa}, v{vHl}", f"v_xor_b32 v{vH+1}, 64, v{vH}"]
        return ops
    put(xaddr())
    if PREF:
        e(f"v_lshlrev_b32 v254, 7, v0\nv_min_u32 v254, CODE_END-{NAME}_kernel-4, v254")
        e(f"s_cmp_gt_u32 {sW}, {PREFW}\ns_cbranch_scc1 {L}NOPF")
        e(f"global_load_dword v255, v254, s[72:73]")
        g.lab(L + "NOPF")
    for i in range(16 * NBLK + (4 if cg else 0)): e(f"v_mov_b32 v{(ACC+i) if i < 16*NBLK else HACC+i-16*NBLK}, 0")
    e(f"v_mov_b32 v{T+9}, {CNT}\nv_mov_b32 v{T+10}, 0\nv_mov_b32 v{T+11}, 0\nv_mov_b32 v{T+12}, 0\nv_mov_b32 v{T+13}, 0")
    A.ds(f"ds_write_b128 v{T+9}, {vr(T+10,4)}", "z")
    A.wait(vm=["sx"])
    g.st(2)
    e(f"v_mov_b32 v{T+8}, 0x3f803f80")
    for i in range(4):
        e(f"v_dot2_f32_bf16 v{T+4}, v{T+i}, v{T+8}, {'0' if i == 0 else f'v{T+4}'}")
        e(f"v_dot2_f32_bf16 v{T+5}, v{T+i}, v{T+i}, {'0' if i == 0 else f'v{T+5}'}")
    for sh in (8, 4, 2, 1):
        for k in (4, 5): e(f"v_add_f32_dpp v{T+k}, v{T+k}, v{T+k} row_ror:{sh} row_mask:0xf bank_mask:0xf")
    for sw in (16, 32):
        for k in (4, 5): e(f"v_mov_b32 v{T+k+2}, v{T+k}")
        for k in (4, 5): e(f"v_permlane{sw}_swap_b32 v{T+k}, v{T+k+2}")
        for k in (4, 5): e(f"v_add_f32 v{T+k}, v{T+k}, v{T+k+2}")
    ln_final(g, f"v{T+4}", f"v{T+5}", f"v{T+6}", f"v{T+7}", f"v{T}")
    e(f"s_lshl_b32 {sT1}, {sT1}, 3\ns_add_u32 {sT1}, {sT1}, {WS_STATS}\ns_mov_b64 exec, 1")
    A.vm(f"buffer_store_dwordx2 {vr(T+6,2)}, v{T+10}, {sr(S_WS,4)}, {sT1} offen {STM}", "ss")
    if cg == 1:
        e(f"s_lshl_b32 {sT0}, {sI}, 2\ns_and_b32 {sT1}, {sJ}, 3\ns_add_u32 {sT0}, {sT0}, {sT1}\ns_lshl_b32 {sT0}, {sT0}, 3\ns_lshr_b32 {sT1}, {sJ}, 2\ns_add_u32 {sT0}, {sT0}, {sT1}\ns_lshl_b32 {sT0}, {sT0}, {FLS}\ns_add_u32 {sT0}, {sT0}, {WS_FLG}")
        e(f"s_cmp_lg_u32 {sW}, 7\ns_cbranch_scc1 NOZF")
        e(f"buffer_store_dwordx4 {vr(T+10,4)}, v{T+10}, {sr(S_WS,4)}, {sT0} offen {STM}")
        g.lab("NOZF")
    e("s_mov_b64 exec, -1")
    def frag_reads(c, m):
        ks, b = divmod(m, NBLK); s = c & 3
        gi = (c * M + m) % NB; buf = FR + 4 * gi
        ri, imm = ra_idx(cg, blocks[b])
        va = vRA + ri + (5 if s >= 2 else 0)
        stride = 192 if blocks[b][0] == "Q" else 256
        return [("ds", f"ds_read_b64_tr_b16 {vr(buf+2*n,2)}, v{va} offset:{(s&1)*WSL + (16*ks+4*n)*stride + imm}", ("f", c, m)) for n in range(2 - opt("HALFRD", 0))]
    def b_read(c, ks):
        k4 = 2 * (c & 1) + ks
        return ("ds", f"ds_read_b128 {vr(BF+4*ks,4)}, v{vB+k4}", ("b", c, ks))
    def halo_reads(c):
        s = c & 3; va = vRA + 4 + (5 if s >= 2 else 0)
        return [("ds", f"ds_read_b64_tr_b16 {vr(HF+2*n,2)}, v{va} offset:{(s&1)*WSL + 4*n*192}", ("h", c)) for n in range(2)] + \
               [("ds", f"ds_read_b128 {vr(HF+4,4)}, v{vH+(c&1)}", ("h", c))]
    assert (4 * M) % NB == 0 or True
    nleft = len(A.vm_q) - max(0, 0)
    A.wait(lds_all=True)
    e("s_barrier")
    g.st(3)
    assert (4 * M) % NB == 0, (M, NB)
    mb = M - BOFF
    nlate = PD - BOFF
    put(b_read(0, 0))
    for m in range(PD): put(frag_reads(0, m))
    GN = 9 if cg == 0 else 8
    def pfu():
        return [f"s_mul_i32 {sT0}, {sPFO}, {sPFS}\ns_mov_b32 exec_lo, {sPFM}\ns_mov_b32 exec_hi, 0",
                ("vm", f"buffer_load_dword v{vPF+1}, v{vPF}, {sr(S_W2,4)}, {sT0} offen", "pf"),
                f"s_mov_b64 exec, -1\ns_add_u32 {sPFO}, {sPFO}, 1\ns_and_b32 {sPFO}, {sPFO}, {PFN-1}"]
    def chunk(c, last):
        pend = []
        for m in range(M):
            ks, b = divmod(m, NBLK)
            if m == 0: put(b_read(c, 1))
            if m + PD < M: put(frag_reads(c, m + PD))
            if cg == 1 and m == 1: put(halo_reads(c))
            if m == 1 and not last:
                e(f"s_cmp_eq_u32 {sCH}, {sNX}\ns_mov_b32 {sCP}, {c}\ns_cbranch_scc1 {L}HOOK")
                g.lab(f"{L}RET{c}")
            if last: last(c, m, "pre")
            if m == mb:
                fin = last and c == 3
                if last:
                    last(c, m, "bar")
                    A.wait(lds_all=True)
                else:
                    A.lds_q = []
                    e(f"s_waitcnt vmcnt({GN + sum(1 for d in (1, 2) if (c - d) % 4 in PFC)}) lgkmcnt(0)")
                if last or not opt("NOBAR", 0): e("s_barrier")
                if MF1:
                    gi = (c * M + m) % NB
                    e(f"v_mfma_f32_32x32x16_bf16 {vr(ACC+16*b,16)}, {vr(FR+4*gi,4)}, {vr(BF+4*ks,4)}, {vr(ACC+16*b,16)}")
                if not fin:
                    if c & 1:
                        e(f"s_mov_b32 {sT3}, {sXa}\ns_mov_b32 {sXa}, {sXb}\ns_mov_b32 {sXb}, {sXc}\ns_mov_b32 {sXc}, {sT3}")
                        put(xaddr())
                    put(b_read((c + 1) & 3, 0))
                    for k in range(nlate + 1): put(frag_reads((c + 1) & 3, k))
                if not last:
                    e(f"s_add_u32 {sCH}, {sCH}, 1")
                    if c == 3:
                        if cg == 0:
                            pend = wpart(c) + [["XSEL"]]
                        else:
                            pend = wpart(c) + [["XSEL"]]
                    else:
                        pend = group(c, sXc if c & 1 else None)
                    if c in PFC: pend = pend + [pfu()]
            elif m > mb and not (last and c == 3):
                put(frag_reads((c + 1) & 3, m - mb + nlate))
            if opt("NODMA", 0): pend = []
            if pend:
                k = -(-len(pend) // (M - m))
                for u in pend[:k]:
                    if u == ["XSEL"]:
                        if cg == 0:
                            e(f"s_cmp_eq_u32 {sIT}, 2\ns_cbranch_scc1 {L}XS1")
                            put(half(c, sXc))
                            e(f"s_branch {L}XS2")
                            g.lab(L + "XS1")
                            put(half(c, None))
                            g.lab(L + "XS2")
                        else:
                            e(f"s_cmp_eq_u32 {sIT}, 2\ns_cbranch_scc1 {L}XS1")
                            put(xpart(sXc))
                            g.lab(L + "XS1")
                    else: put(u)
                pend = pend[k:]
            if last: last(c, m, "post")
            A.wait(lds=[("f", c, m), ("b", c, ks)])
            gi = (c * M + m) % NB
            if not (MF1 and m == mb): e(f"v_mfma_f32_32x32x16_bf16 {vr(ACC+16*b,16)}, {vr(FR+4*gi,4)}, {vr(BF+4*ks,4)}, {vr(ACC+16*b,16)}")
            if cg == 1 and m == 5:
                A.wait(lds=[("h", c)])
                e(f"v_mfma_f32_16x16x32_bf16 {vr(HACC,4)}, {vr(HF,4)}, {vr(HF+4,4)}, {vr(HACC,4)}")
    q0 = list(A.lds_q)
    g.lab(L + "LOOP")
    e(f"s_add_u32 {sT0}, {sIT}, {sQ}\ns_cmp_eq_u32 {sT0}, 3\ns_cselect_b32 {sT0}, {512*3584*ADV}, 0")
    if cg == 0: e(f"s_cselect_b32 {sT1}, {512*3072*ADV}, 0\ns_sub_u32 {sB}, {sB}, {sT1}")
    e(f"s_sub_u32 {sA}, {sA}, {sT0}")
    for c in range(4): chunk(c, None)
    assert A.lds_q[-len(q0):] == q0 or len(A.lds_q) <= len(q0), (A.lds_q, q0)
    e(f"s_add_u32 {sIT}, {sIT}, 1")
    if PFC:
        n1 = 64 // PFN
        e(f"s_mov_b32 {sT0}, {hex((1 << n1) - 1)}\ns_cmp_eq_u32 {sW}, 7\ns_cselect_b32 {sT0}, {hex((1 << (2*n1)) - 1)}, {sT0}\ns_cmp_ge_u32 {sIT}, {PFI}\ns_cselect_b32 {sPFM}, {sT0}, 1")
    e(f"s_cmp_lt_u32 {sIT}, 3\ns_cbranch_scc1 {L}LOOP")
    g.st(4)
    nW = 4 if cg == 0 else 2
    pfq = lambda c: (["pf"] if c in PFC else [])
    A.vm_q = [("w", 13)] * (GN - nW) + pfq(1) + [("w", 14)] * nW + pfq(2) + [("w", 15)] * nW + pfq(3)
    A.lds_q = list(q0)
    p2setup(g)
    def w2(j, area):
        return [[f"s_add_u32 m0, {sT2}, {AREA[area]+1024*h}", ("vm", f"buffer_load_dwordx4 v{vD}, {sr(S_W2,4)}, {sW2o} offen lds", ("w2", j)),
                 f"s_add_u32 {sW2o}, {sW2o}, 8192"] for h in range(2)]
    FL = T; CSR = T + 4; STT = T + 16
    dpp = []
    def last(c, m, where):
        nonlocal dpp
        if where == "pre":
            if c == 0 and m == 0:
                e(f"v_lshlrev_b32 v{vD+1}, 2, v1")
                A.vm(f"buffer_load_dword v{FL}, v{vD+1}, {sr(S_DBG,4)}, 0 offen sc0 sc1", "fl")
            if c == 0 and m in (1, 2): put(w2(m - 1, AMAP[m - 1]))
            if c == 1 and m == 2:
                A.wait(vm=["fl"])
                e(f"s_mov_b32 {sT0}, 0")
                g.lab(L + "F1")
                e(f"v_and_b32 v{FL}, 0x01010101, v{FL}\nv_cmp_ne_u32 vcc, 0x01010101, v{FL}\ns_add_u32 {sT0}, {sT0}, 1")
                e(f"s_cbranch_vccz {L}F1OK\ns_cmp_gt_u32 {sT0}, 100000\ns_cbranch_scc1 {L}F1OK")
                e(f"buffer_load_dword v{FL}, v{vD+1}, {sr(S_DBG,4)}, 0 offen sc0 sc1\ns_waitcnt vmcnt(0)\ns_branch {L}F1")
                g.lab(L + "F1OK")
                e(f"s_mul_i32 {sT0}, {sCB}, 22528\ns_add_u32 {sT0}, {sT0}, {WS_CS}\ns_mul_i32 {sT1}, {sW}, 192")
                for a in range(3):
                    e(f"v_add_u32 v{vD+2+a}, {sT1}, v1" if a == 0 else f"v_add_u32 v{vD+2+a}, 64, v{vD+1+a}")
                for a in range(3):
                    e(f"v_min_u32 v{vD+2+a}, 1408, v{vD+2+a}\nv_lshlrev_b32 v{vD+5}, 4, v{vD+2+a}")
                    A.vm(f"buffer_load_dwordx4 {vr(CSR+4*a,4)}, v{vD+5}, {sr(S_WS,4)}, {sT0} offen sc0 sc1", "cs")
                e(f"s_lshl_b32 {sT0}, {sRB}, 7\ns_lshl_b32 {sT1}, {sRG}, 5\ns_add_u32 {sT1}, {sT1}, {sT0}\ns_lshl_b32 {sT1}, {sT1}, 3\ns_add_u32 {sT1}, {sT1}, {WS_STATS}")
                e(f"v_and_b32 v{vD+5}, 31, v1\nv_lshlrev_b32 v{vD+5}, 3, v{vD+5}")
                A.vm(f"buffer_load_dwordx2 {vr(STT,2)}, v{vD+5}, {sr(S_WS,4)}, {sT1} offen sc0 sc1", "cs")
                if cg == 1:
                    e(f"s_sub_u32 {sT0}, {sT0}, 16\nv_and_b32 v{vD+5}, 15, v1\nv_add_u32 v{vD+5}, {sT0}, v{vD+5}\nv_max_i32 v{vD+5}, 0, v{vD+5}\nv_lshlrev_b32 v{vD+5}, 3, v{vD+5}")
                    e(f"s_mov_b32 {sT1}, {WS_STATS}")
                    A.vm(f"buffer_load_dwordx2 {vr(STT+2,2)}, v{vD+5}, {sr(S_WS,4)}, {sT1} offen sc0 sc1", "cs")
            if c == 3 and m == 0:
                A.wait(vm=["cs"])
                for sh in (8, 4, 2, 1):
                    for k in range(12): dpp.append(f"v_add_f32_dpp v{CSR+k}, v{CSR+k}, v{CSR+k} row_ror:{sh} row_mask:0xf bank_mask:0xf")
                for a in range(3):
                    dpp.append(f"v_lshrrev_b32 v{vD+2+a}, 4, v{vD+2+a}")
                    dpp.append(f"v_lshlrev_b32 v{vD+2+a}, 4, v{vD+2+a}")
                    dpp.append(("ds", f"ds_write_b128 v{vD+2+a}, {vr(CSR+4*a,4)} offset:{0}", "csw"))
                dpp = [f"v_add_u32 v{vD+2+a}, {CST}, v{vD+2+a}" for a in range(0)] + dpp
            if c == 3 and dpp:
                k = -(-len(dpp) // max(1, (mb - m)))
                if m == mb: k = len(dpp)
                for o in dpp[:k]:
                    if isinstance(o, tuple):
                        reg = o[1].split()[1].rstrip(",")
                        e(f"v_add_u32 {reg}, {CST}, {reg}")
                    put(o)
                dpp = dpp[k:]
        if where == "bar":
            if c < 3: A.wait(vm=[("w", 13 + c)])
        if where == "post" and m >= mb:
            js = {0: [2], 1: [3, 4, 5], 2: [6], 3: [7]}[c]
            if m - mb < len(js): put(w2(js[m - mb], AMAP[js[m - mb]]))
    for c in range(4): chunk(c, last)
    g.st(5)
    vM, vR_ = STT, STT + 1
    e(f"v_lshrrev_b32 v9, 5, v1\nv_lshlrev_b32 v9, 4, v9\nv_add_u32 v9, {CST}, v9\nv_mul_f32 v{STT+4}, v{vR_}, v{vR_}\nv_lshlrev_b32 v8, 4, v1")
    e(f"s_lshl_b32 {sT0}, {sRB}, 2\ns_add_u32 {sT0}, {sT0}, {sRG}\ns_mul_i32 {sT0}, {sT0}, 144\ns_lshl_b32 {sT1}, {sCB}, 3\ns_add_u32 {sT1}, {sT1}, {sT0}\ns_add_u32 {sT1}, {sT1}, {32 + (3 if cg else 0)}\ns_lshl_b32 {sT1}, {sT1}, 10")
    CB_ = [24, 40, 192, 208, 224, 240]
    order = [i for i, n in enumerate(blocks) if n[0] == "G"] + [i for i, n in enumerate(blocks) if n[0] == "Q"]
    def tcol(name): return 32 * int(name[1]) if name[0] == "Q" else 96 + 32 * int(name[1])
    for oi, bi in enumerate(order):
        for q in range(4):
            A.ds(f"ds_read_b128 {vr(CB_[oi]+4*q,4)}, v9 offset:{4*tcol(blocks[bi]) + 32*q}", ("c", oi))
    if cg == 1:
        e(f"v_lshrrev_b32 v10, 4, v1\nv_lshlrev_b32 v10, 4, v10\ns_lshl_b32 {sT3}, {sRG}, 6\ns_add_u32 {sT3}, {sT3}, {CST+128}\nv_add_u32 v10, {sT3}, v10")
        A.ds(f"ds_read_b128 {vr(HF,4)}, v10", "ch")
    e(f"s_lshl_b32 {sT3}, {sRG}, 5\ns_add_u32 {sT3}, {sT3}, 16\nv_and_b32 v11, 31, v1\nv_add_u32 v11, {sT3}, v11\nv_mul_u32_u24 v11, {QS}, v11\nv_lshrrev_b32 v12, 5, v1\nv_lshl_add_u32 v11, v12, 4, v11\nv_add_u32 v11, {QKV}, v11")
    ng = 0
    e(f"s_cmp_lt_u32 {sCB}, 14\ns_cbranch_scc1 {L}DOG\ns_waitcnt vmcnt(0)\ns_nop 7\ns_nop 7\ns_branch {L}SKIPG")
    g.lab(L + "DOG")
    for oi, bi in enumerate(order):
        a = ACC + 16 * bi; cb_ = CB_[oi]
        if blocks[bi] == "Q0": g.lab(L + "SKIPG")
        A.wait(lds=[("c", oi)])
        for i in range(8):
            e(f"v_pk_fma_f32 {vr(a+2*i,2)}, {vr(vM,2)}, {vr(cb_+2*i,2)}, {vr(a+2*i,2)} op_sel_hi:[0,1,1] neg_lo:[1,0,0] neg_hi:[1,0,0]")
        if blocks[bi][0] == "G":
            for i in range(8): e(f"v_max_f32 v{a+i}, 0, v{a+i}")
            for i in range(4): e(f"v_pk_mul_f32 {vr(a+8+2*i,2)}, {vr(STT+4,2)}, {vr(a+8+2*i,2)} op_sel_hi:[0,1]")
            for i in range(4): e(f"v_pk_mul_f32 {vr(a+2*i,2)}, {vr(a+2*i,2)}, {vr(a+8+2*i,2)}")
            for i in range(4): e(f"v_cvt_pk_bf16_f32 v{a+8+i}, v{a+2*i}, v{a+2*i+1}")
            if ng == 4: e(f"s_add_u32 {sT1}, {sT1}, 4096")
            A.vm(f"buffer_store_dwordx4 {vr(a+8,4)}, v8, {sr(S_WS,4)}, {sT1} offen offset:{1024*(ng%4)} {STM}", "hs")
            ng += 1
        else:
            for i in range(8): e(f"v_pk_mul_f32 {vr(a+2*i,2)}, {vr(vM,2)}, {vr(a+2*i,2)} op_sel:[1,0] op_sel_hi:[1,1]")
            for i in range(8): e(f"v_cvt_pk_bf16_f32 v{cb_+i}, v{a+2*i}, v{a+2*i+1}")
            for h in range(2): A.ds(f"ds_write_b128 v11, {vr(cb_+4*h,4)} offset:{64*bi+32*h}", "qw")
    if cg == 1:
        g.lab(L + "SKIPG")
        A.wait(lds=["ch"])
        for i in range(4): e(f"v_fma_f32 v{HACC+i}, -v{STT+2}, v{HF+i}, v{HACC+i}")
        for i in range(4): e(f"v_mul_f32 v{HACC+i}, v{STT+3}, v{HACC+i}")
        e(f"v_cvt_pk_bf16_f32 v{HF+4}, v{HACC}, v{HACC+1}\nv_cvt_pk_bf16_f32 v{HF+5}, v{HACC+2}, v{HACC+3}")
        e(f"v_and_b32 v10, 15, v1\nv_mul_u32_u24 v10, {QS}, v10\nv_bfe_u32 v12, v1, 4, 1\nv_lshl_add_u32 v10, v12, 4, v10\nv_lshrrev_b32 v12, 5, v1\nv_lshl_add_u32 v10, v12, 3, v10")
        e(f"s_lshl_b32 {sT3}, {sRG}, 5\ns_add_u32 {sT3}, {sT3}, {QKV+64}\nv_add_u32 v10, {sT3}, v10")
        A.ds(f"ds_write_b64 v10, {vr(HF+4,2)}", "qw")
    A.wait(lds_all=True, vm=[("w2", 7)])
    if cg == 0: e("s_branch ATT")
    return

def hook(g, cg):
    A = g.A; e = g.e; L = f"C{cg}_"
    blocks = BLK[cg]
    g.lab(L + "HOOK")
    e(f"s_cmp_lg_u32 {sCNT}, 0\ns_cbranch_scc1 {L}HK2")
    e(f"s_mul_i32 {sT0}, {sCP}, {WSL}\ns_cmp_ge_u32 {sCP}, 2\ns_cselect_b32 {sT1}, {XSL}, 0\ns_add_u32 {sT0}, {sT0}, {sT1}")
    e(f"s_lshr_b32 {sT1}, {sRG}, 1\ns_lshl_b32 {sT1}, {sT1}, 2\ns_and_b32 {sT2}, {sRG}, 1\ns_add_u32 {sT1}, {sT1}, {sT2}")
    e(f"s_lshl_b32 {sT2}, {sT1}, 10\ns_add_u32 {sT2}, {sT2}, {sT0}\ns_mul_i32 {sT1}, {sT1}, 768\ns_add_u32 {sT1}, {sT1}, {sT0}")
    for i in range(4):
        e(f"v_add_u32 v{T+i}, {sT1 if (cg == 0 and i == 3) else sT2}, v{vRA+i}")
    for b, nm in enumerate(blocks):
        ri, imm = ra_idx(cg, nm)
        e(f"ds_read_b64_tr_b16 {vr(T+4+2*b,2)}, v{T+ri} offset:{imm}")
    e(f"v_mov_b32 v{T+16}, 0x3f803f80\nv_and_b32 v{T+17}, 31, v1\nv_lshlrev_b32 v{T+17}, 4, v{T+17}\ns_lshl_b32 {sT0}, {sRG}, 2\ns_add_u32 {sT0}, {sT0}, {SCR}\nv_add_u32 v{T+17}, {sT0}, v{T+17}")
    e("s_waitcnt lgkmcnt(0)")
    n = len(blocks)
    for b in range(n): e(f"v_dot2_f32_bf16 v{T+18+b}, v{T+4+2*b}, v{T+16}, 0")
    for b in range(n): e(f"v_dot2_f32_bf16 v{T+18+b}, v{T+5+2*b}, v{T+16}, v{T+18+b}")
    for b in range(n): e(f"v_mov_b32 v{T+4+b}, v{T+18+b}")
    for b in range(n): e(f"v_permlane32_swap_b32 v{T+18+b}, v{T+4+b}")
    for b in range(n): e(f"v_add_f32 v{T+18+b}, v{T+18+b}, v{T+4+b}")
    for b, nm in enumerate(blocks):
        col = 32 * int(nm[1]) if nm[0] == "Q" else 96 + 32 * int(nm[1])
        e(f"ds_write_b32 v{T+17}, v{T+18+b} offset:{16*col}")
    if cg == 0:
        e(f"s_mov_b32 {sNX}, 99")
    else:
        e(f"s_add_u32 {sNX}, {sNX}, 1\ns_cmp_eq_u32 {sW}, 7\ns_cselect_b32 {sNX}, {sNX}, 99\ns_mov_b32 {sCNT}, 1\ns_branch {L}HKR")
        g.lab(L + "HK2")
        e(f"s_cmp_lg_u32 {sCNT}, 1\ns_cbranch_scc1 {L}HK3")
        e(f"v_lshlrev_b32 v{T}, 4, v1\nv_add_u32 v{T}, {SCR}, v{T}")
        for a in range(6): e(f"ds_read_b128 {vr(T+4+4*a,4)}, v{T} offset:{1024*a}")
        e(f"v_lshrrev_b32 v{T+1}, 2, v1\nv_and_b32 v{T+2}, 3, v1\nv_lshlrev_b32 v{T+1}, 8, v{T+1}\nv_lshl_add_u32 v{T+1}, v{T+2}, 2, v{T+1}")
        e(f"s_mul_i32 {sT0}, {sCB}, 22528\ns_lshl_b32 {sT1}, {sRB}, 4\ns_add_u32 {sT0}, {sT0}, {sT1}\ns_add_u32 {sT0}, {sT0}, {WS_CS}\ns_waitcnt lgkmcnt(0)")
        for a in range(6):
            b = T + 4 + 4 * a
            e(f"v_add_f32 v{b}, v{b}, v{b+1}\nv_add_f32 v{b+2}, v{b+2}, v{b+3}")
        for a in range(6):
            b = T + 4 + 4 * a
            e(f"v_add_f32 v{b}, v{b}, v{b+2}")
        for a in range(6):
            b = T + 4 + 4 * a
            if a == 5: e("s_mov_b32 exec_hi, 0")
            e(f"buffer_store_dword v{b}, v{T+1}, {sr(S_WS,4)}, {sT0} offen {STM}\ns_add_u32 {sT0}, {sT0}, 4096")
        e(f"s_mov_b64 exec, -1\ns_add_u32 {sNX}, {sNX}, 3\ns_mov_b32 {sCNT}, 2\ns_branch {L}HKR")
        g.lab(L + "HK3")
        e(f"s_lshl_b32 {sT0}, {sRB}, 4\ns_add_u32 {sT0}, {sT0}, {sCB}\nv_mov_b32 v{T}, 0\nv_mov_b32 v{T+1}, 1\ns_mov_b64 exec, 1\ns_mov_b32 {sNX}, 99")
        e(f"buffer_store_byte v{T+1}, v{T}, {sr(S_DBG,4)}, {sT0} offen sc0 sc1\ns_mov_b64 exec, -1")
    g.lab(L + ("HKR" if cg else "HK2"))
    e("s_nop 1")
    for c in range(3): e(f"s_cmp_eq_u32 {sCP}, {c}\ns_cbranch_scc1 {L}RET{c}")
    e(f"s_branch {L}RET3")

AMAP = [7, 0, 1, 2, 3, 4, 5, 6]
sRB2, sCB2, sN = "s53", "s54", "s55"
sRB2, sCB2, sN, sST = "s48", "s49", "s51", "s52"
def p2setup(g):
    e = g.e
    e(f"s_lshl_b32 {sRB2}, {sI}, 2\ns_and_b32 {sT0}, {sJ}, 3\ns_add_u32 {sRB2}, {sRB2}, {sT0}\ns_lshr_b32 {sCB2}, {sJ}, 2\ns_xor_b32 {sCB2}, {sCB2}, {opt('CBX', 0)}")
    e(f"s_mul_i32 {sST}, {sW}, 18\ns_sub_i32 {sT0}, {sW}, 2\ns_max_i32 {sT0}, {sT0}, 0\ns_min_i32 {sT0}, {sT0}, 2\ns_lshl_b32 {sT0}, {sT0}, 1\ns_add_u32 {sST}, {sST}, {sT0}")
    e(f"s_lshr_b32 {sT0}, {sW}, 1\ns_cmp_eq_u32 {sT0}, 1\ns_cselect_b32 {sN}, 20, 18\ns_add_u32 {sAo}, {sST}, 32")
    e(f"s_sub_u32 {sT0}, {sW}, 6\ns_lshl_b32 {sT0}, {sT0}, 4\ns_mov_b32 {sMSK}, 0x02020202\ns_mov_b32 s{S_W2+2}, {1792*1024}\ns_cmp_ge_u32 {sW}, 6")
    e(f"s_cselect_b32 {sST}, {sT0}, {sST}\ns_cselect_b32 {sN}, 16, {sN}\ns_cselect_b32 {sAo}, {sT0}, {sAo}\ns_cselect_b32 {sMSK}, 0x04040404, {sMSK}")
    e(f"s_cselect_b32 s{S_W2}, s8, s16\ns_cselect_b32 s{S_W2+1}, s9, s17\ns_cselect_b32 s{S_W2+2}, {512*1024}, s{S_W2+2}\ns_mov_b32 s{S_W2+3}, 0x00020000")
    e(f"s_lshl_b32 {sW2o}, {sST}, 14\ns_lshl_b32 {sT0}, {sCB2}, 7\ns_add_u32 {sW2o}, {sW2o}, {sT0}")
    e(f"s_mul_i32 {sT0}, {sRB2}, 288\ns_add_u32 {sAo}, {sAo}, {sT0}\ns_lshl_b32 {sAo}, {sAo}, 10\ns_lshl_b32 {sT2}, {sW}, 11")
    e(f"v_lshrrev_b32 v{vD+1}, 3, v1\nv_and_b32 v{vD+2}, 7, v1\nv_bfe_u32 v{vD+3}, v1, 4, 1\nv_lshlrev_b32 v{vD+3}, 2, v{vD+3}\nv_xor_b32 v{vD+2}, v{vD+2}, v{vD+3}\nv_lshlrev_b32 v{vD+1}, 10, v{vD+1}\nv_lshl_add_u32 v{vD}, v{vD+2}, 4, v{vD+1}")

def counter_flag(g, idx, val, lab):
    e = g.e
    e(f"v_mov_b32 v9, {CNT+4*idx}\nv_mov_b32 v10, 1\ns_mov_b64 exec, 1")
    e(f"ds_add_rtn_u32 v10, v9, v10\ns_waitcnt lgkmcnt(0)\nv_readfirstlane_b32 {sT0}, v10")
    e(f"s_cmp_lg_u32 {sT0}, 7\ns_cbranch_scc1 {lab}")
    e(f"s_mov_b64 exec, 0xffff\ns_lshl_b32 {sT0}, {sRB}, {4+FLS}\ns_add_u32 {sT0}, {sT0}, {sCB}\ns_add_u32 {sT0}, {sT0}, {WS_FLG}\nv_lshlrev_b32 v9, {FLS}, v1\nv_mov_b32 v10, {val}")
    e(f"buffer_store_byte v10, v9, {sr(S_WS,4)}, {sT0} offen sc0 sc1")
    g.lab(lab)
    e("s_mov_b64 exec, -1")

def rest(g):
    A = g.A; e = g.e; put = g.put
    g.lab("ATT")
    A.lds_q = []; A.vm_q = ["hs"] * 5
    e("s_barrier")
    g.st(6)
    PK = 128; WF = 24; AR = 192; AC2 = 64
    e("""v_lshrrev_b32 v9, 5, v1
v_bfe_u32 v10, v1, 4, 1
v_bfe_u32 v11, v1, 2, 2
v_bfe_u32 v12, v1, 1, 1
v_and_b32 v13, 1, v1
v_lshl_add_u32 v14, v9, 2, v11
v_lshlrev_b32 v14, 7, v14
v_lshl_add_u32 v15, v10, 1, v12
v_lshrrev_b32 v11, 1, v11
v_lshl_add_u32 v15, v11, 2, v15
v_lshl_add_u32 v14, v15, 4, v14
v_lshl_add_u32 v14, v13, 3, v14""")
    e(f"v_add_u32 v16, {sT2}, v14\nv_xor_b32 v17, 64, v16\nv_add_u32 v18, 0x10000, v16\nv_add_u32 v19, 0x10000, v17\nv_add_u32 v20, {AREA[7]}, v16\nv_add_u32 v21, {AREA[7]}, v17")
    def trs(j, buf, tag):
        a = AMAP[j % 8]
        base, off = (20, 0) if a == 7 else ((16, AREA[a]) if a < 4 else (18, AREA[a] - 0x10000))
        return [("ds", f"ds_read_b64_tr_b16 {vr(buf+4*cbk+2*h,2)}, v{base+cbk} offset:{off+1024*h}", tag) for cbk in range(2) for h in range(2)]
    for j in range(8): put(trs(j, PK + 8 * j, "pk"))
    e(f"s_lshl_b32 {sT3}, {sRG}, 5\nv_and_b32 v22, 31, v1\nv_add_u32 v22, {sT3}, v22\nv_add_u32 v23, 2, v22\nv_mul_u32_u24 v23, {QS}, v23\nv_lshl_add_u32 v23, v9, 4, v23")
    e(f"s_lshr_b32 {sT1}, {sW}, 2\ns_lshl_b32 {sT3}, {sT1}, 5\ns_add_u32 {sT3}, {sT3}, {QKV}\nv_add_u32 v23, {sT3}, v23")
    Q = 24; K = 28; V = 64; Lg = 96; P = 104; O = 120
    A.ds(f"ds_read_b128 {vr(Q,4)}, v23 offset:{14*QS}", "q")
    for w in range(8): A.ds(f"ds_read_b128 {vr(K+4*w,4)}, v23 offset:{(14-2*w)*QS+64}", ("k", w))
    A.wait(lds=["pk"])
    def w2(j, cond=None):
        ops = []
        so = sW2o
        if cond is not None:
            ops.append(f"s_cmp_gt_u32 {sN}, {cond}\ns_cselect_b32 {sT0}, {sW2o}, 0\ns_cselect_b32 {sT1}, 8192, 0"); so = sT0
        for h in range(2):
            ops += [f"s_add_u32 m0, {sT2}, {AREA[AMAP[j%8]]+1024*h}", ("vm", f"buffer_load_dwordx4 v{vD}, {sr(S_W2,4)}, {so} offen lds", ("w2", j))]
            if cond is not None and h == 0: ops.append(f"s_add_u32 {sT0}, {sT0}, {sT1}")
            ops.append(f"s_add_u32 {sW2o}, {sW2o}, 8192")
        return ops
    for w in range(8):
        put(w2(8 + w))
        A.wait(lds=["q", ("k", w)])
        A.ds(f"ds_read_b128 {vr(V+4*w,4)}, v23 offset:{(14-2*w)*QS+128}", ("v", w))
        for i in range(4):
            e(f"v_dot2_f32_bf16 v{Lg+w}, v{Q+i}, v{K+4*w+i}, {'0' if i == 0 else f'v{Lg+w}'}")
    for p in range(4): e(f"v_permlane32_swap_b32 v{Lg+2*p}, v{Lg+2*p+1}")
    for p in range(4): e(f"v_add_f32 v{Lg+p}, v{Lg+2*p}, v{Lg+2*p+1}") if p else e(f"v_add_f32 v{Lg}, v{Lg}, v{Lg+1}")
    for p in range(2): e(f"v_cvt_pk_bf16_f32 v{Lg+4+p}, v{Lg+2*p}, v{Lg+2*p+1}")
    for p in range(2): e(f"v_lshlrev_b32 v{Lg+2*p}, 16, v{Lg+4+p}\nv_and_b32 v{Lg+2*p+1}, 0xffff0000, v{Lg+4+p}")
    e(f"s_cmp_lg_u32 {sRB}, 0\ns_cbranch_scc1 NOMASK")
    e(f"v_mov_b32 v10, 0xf149f2ca\nv_lshlrev_b32 v11, 1, v9\nv_sub_u32 v11, v22, v11")
    for p in range(4):
        e(f"v_cmp_gt_i32 vcc, {4*p}, v11\nv_cndmask_b32 v{Lg+p}, v{Lg+p}, v10, vcc")
    e("s_nop 3")
    g.lab("NOMASK")
    e("s_nop 3")
    e(f"v_max3_f32 v10, v{Lg}, v{Lg+1}, v{Lg+2}\nv_max_f32 v10, v10, v{Lg+3}\nv_mov_b32 v11, v10\nv_permlane32_swap_b32 v10, v11\nv_max_f32 v10, v10, v11")
    e("v_mov_b32 v11, 0x3eb8aa3b")
    for p in range(4): e(f"v_sub_f32 v{Lg+p}, v{Lg+p}, v10")
    for p in range(4): e(f"v_mul_f32 v{Lg+p}, v11, v{Lg+p}")
    for p in range(4): e(f"v_exp_f32 v{Lg+p}, v{Lg+p}")
    e(f"v_add_f32 v10, v{Lg}, v{Lg+1}\nv_add_f32 v11, v{Lg+2}, v{Lg+3}\nv_add_f32 v10, v10, v11\nv_mov_b32 v11, v10\nv_permlane32_swap_b32 v10, v11\nv_add_f32 v10, v10, v11\nv_rcp_f32 v10, v10")
    for p in range(4): e(f"v_mul_f32 v{Lg+p}, v10, v{Lg+p}")
    for p in range(4): e(f"v_cvt_pk_bf16_f32 v{P+4*p}, v{Lg+p}, 0")
    for p in range(4): e(f"v_mov_b32 v{P+4*p+2}, v{P+4*p}")
    for p in range(4): e(f"v_permlane32_swap_b32 v{P+4*p}, v{P+4*p+2}")
    for w in range(8): e(f"v_lshlrev_b32 v{P+2*w+1}, 16, v{P+2*w}")
    A.wait(vm=["hs"])
    A.wait(lds_all=True)
    counter_flag(g, 0, 3, "NOF2")
    A.vm_q.append("f2")
    g.st(7)
    for w in range(8):
        for i in range(4):
            for h in range(2):
                e(f"v_dot2_f32_bf16 v{O+2*i+h}, v{V+4*w+i}, v{P+2*w+h}, {'0' if w == 0 else f'v{O+2*i+h}'}")
    for i in range(4): e(f"v_cvt_pk_bf16_f32 v{Q+i}, v{O+2*i}, v{O+2*i+1}")
    e(f"s_lshl_b32 {sT0}, {sRB}, 2\ns_add_u32 {sT0}, {sT0}, {sRG}\ns_mul_i32 {sT0}, {sT0}, 144\ns_lshl_b32 {sT3}, {sCB}, 1\ns_add_u32 {sT0}, {sT0}, {sT3}\ns_lshr_b32 {sT1}, {sW}, 2\ns_add_u32 {sT0}, {sT0}, {sT1}\ns_lshl_b32 {sT0}, {sT0}, 10")
    A.vm(f"buffer_store_dwordx4 {vr(Q,4)}, v8, {sr(S_WS,4)}, {sT0} offen {STM}", "os")
    g.srd(S_A, 18, 2048 * 1024)
    e(f"s_lshr_b32 {sT0}, {sW}, 2\ns_lshl_b32 {sT1}, {sRB2}, 1\ns_add_u32 {sT1}, {sT1}, {sT0}\ns_lshl_b32 {sT1}, {sT1}, 15\ns_and_b32 {sT0}, {sW}, 3\ns_lshl_b32 {sT0}, {sT0}, 5\ns_add_u32 {sT1}, {sT1}, {sT0}\ns_lshl_b32 {sT0}, {sCB2}, 7\ns_add_u32 {sSLOT}, {sT1}, {sT0}")
    e("v_and_b32 v10, 31, v1\nv_lshlrev_b32 v10, 10, v10\nv_lshrrev_b32 v9, 5, v1\nv_lshl_add_u32 v22, v9, 3, v10\nv_lshl_add_u32 v23, v9, 4, v10")
    XR = 56
    for q in range(2): A.vm(f"buffer_load_dwordx2 {vr(XR+2*q,2)}, v22, {sr(S_X,4)}, {sSLOT} offen offset:{16*q}", "x")
    e(f"v_add_u32 v15, {144*1024}, v8")
    for i in range(64): e(f"v_mov_b32 v{AC2+i}, 0")
    A.wait(vm=["os"])
    counter_flag(g, 1, 7, "NOF3")
    g.st(8)
    e(f"s_lshl_b32 {sT0}, {sRB2}, 3\ns_add_u32 {sT0}, {sT0}, {sCB2}\ns_lshl_b32 {sT0}, {sT0}, {FLS}\ns_add_u32 {sT0}, {sT0}, {WS_FLG}\nv_mov_b32 v9, 0\ns_mov_b32 {sT1}, 0\nv_mov_b32 v14, {CNT+8}")
    e(f"s_cmp_lg_u32 {sW}, 7\ns_cbranch_scc1 LSPIN")
    g.lab("POLL")
    e(f"buffer_load_dwordx4 v[10:13], v9, {sr(S_WS,4)}, {sT0} offen sc0 sc1\ns_waitcnt vmcnt(0)")
    e(f"v_and_b32 v10, v10, v11\nv_and_b32 v12, v12, v13\nv_and_b32 v10, v10, v12\ns_nop 1\nv_readfirstlane_b32 {sT3}, v10")
    e(f"ds_write_b32 v14, v10")
    e(f"s_add_u32 {sT1}, {sT1}, 1\ns_cmp_gt_u32 {sT1}, 100000\ns_cbranch_scc1 POLLD")
    e(f"s_and_b32 {sT3}, {sT3}, {sMSK}\ns_cmp_eq_u32 {sT3}, {sMSK}\ns_cbranch_scc1 POLLD\ns_sleep {opt('PSL', 4)}\ns_branch POLL")
    g.lab("LSPIN")
    e(f"ds_read_b32 v10, v14\ns_waitcnt lgkmcnt(0)\nv_readfirstlane_b32 {sT3}, v10")
    e(f"s_add_u32 {sT1}, {sT1}, 1\ns_cmp_gt_u32 {sT1}, 1000000\ns_cbranch_scc1 POLLE")
    e(f"s_and_b32 {sT3}, {sT3}, {sMSK}\ns_cmp_eq_u32 {sT3}, {sMSK}\ns_cbranch_scc1 POLLE\ns_sleep 1\ns_branch LSPIN")
    g.lab("POLLE")
    e("s_waitcnt vmcnt(0)")
    g.lab("POLLD")
    A.vm_q = []
    g.st(9)
    def aload(s):
        ops = []
        so = sAo
        if s >= 16:
            ops.append(f"s_cmp_gt_u32 {sN}, {s}\ns_cselect_b32 {sT3}, {sAo}, {WS_DUMMY}"); so = sT3
        for h in range(2):
            ops.append(("vm", f"buffer_load_dwordx4 {vr(AR+8*(s%8)+4*h,4)}, v{8 if h == 0 else 15}, {sr(S_WS,4)}, {so} offen offset:{1024*(s%4)}", ("a", s)))
        if s % 4 == 3: ops.append(f"s_add_u32 {sAo}, {sAo}, 4096")
        return ops
    for s in range(8): put(aload(s))
    for s in range(20):
        if 8 <= s + 1 < 20:
            if s + 1 >= 16: A.wait(vm=[("w2", s + 1)])
            put(trs(s + 1, WF + 8 * ((s + 1) % 2), ("f", s + 1)))
        buf = PK + 8 * s if s < 8 else WF + 8 * (s % 2)
        A.wait(vm=[("a", s)], lds=[("f", s)])
        if 8 <= s < 12: put(w2(s + 8, cond=s + 8))
        for k in range(4):
            e(f"v_mfma_f32_32x32x16_bf16 {vr(AC2+16*k,16)}, {vr(buf+4*(k&1),4)}, {vr(AR+8*(s%8)+4*(k>>1),4)}, {vr(AC2+16*k,16)}")
        if s + 8 < 20: put(aload(s + 8))
        if s in (15, 17): e(f"s_cmp_eq_u32 {sN}, {s+1}\ns_cbranch_scc1 RED")
    g.lab("RED")
    g.st(10)
    e("s_waitcnt vmcnt(0) lgkmcnt(0)\ns_nop 7\ns_nop 7")
    A.vm_q = []; A.lds_q = []
    e(f"v_add_u32 v16, {sT2}, v8\nv_add_u32 v18, 0x10000, v16\nv_add_u32 v20, {AREA[7]}, v16")
    for d in range(8):
        base, off = (20, 0) if d == 7 else ((16, AREA[d]) if d < 4 else (18, AREA[d] - 0x10000))
        for h in range(2):
            A.ds(f"ds_write_b128 v{base}, {vr(AC2+8*d+4*h,4)} offset:{off+1024*h}", "pw")
    e(f"s_lshl_b32 {sT0}, {sW}, 14\ns_cmp_eq_u32 {sW}, 7\ns_cselect_b32 {sT0}, {AREA[7]}, {sT0}\nv_add_u32 v16, {sT0}, v8")
    A.wait(lds_all=True)
    e("s_barrier")
    R = 128
    for s in range(8):
        for h in range(2): A.ds(f"ds_read_b128 {vr(R+8*s+4*h,4)}, v16 offset:{2048*s+1024*h}", ("r", s))
    Oo = R; S = R + 48; Tm = 64; Gt = 80
    for s in (1, 2, 3, 4, 5):
        A.wait(lds=[("r", s)])
        for i in range(4): e(f"v_pk_add_f32 {vr(Oo+2*i,2)}, {vr(Oo+2*i,2)}, {vr(R+8*s+2*i,2)}")
    A.wait(lds=[("r", 7)])
    for i in range(4): e(f"v_pk_add_f32 {vr(S+2*i,2)}, {vr(S+2*i,2)}, {vr(R+56+2*i,2)}")
    def rnd8(b, tmp):
        for i in range(4): e(f"v_cvt_pk_bf16_f32 v{tmp+i}, v{b+2*i}, v{b+2*i+1}")
        for i in range(4): e(f"v_lshlrev_b32 v{b+2*i}, 16, v{tmp+i}\nv_and_b32 v{b+2*i+1}, 0xffff0000, v{tmp+i}")
    rnd8(Oo, Tm); rnd8(S, Tm + 4)
    for i in range(8): e(f"v_mul_f32 v{Gt+i}, 0xbfb8aa3b, v{Oo+i}")
    for i in range(8): e(f"v_exp_f32 v{Gt+i}, v{Gt+i}")
    for i in range(8): e(f"v_add_f32 v{Gt+i}, 1.0, v{Gt+i}")
    for i in range(8): e(f"v_rcp_f32 v{Gt+i}, v{Gt+i}")
    for i in range(8): e(f"v_mul_f32 v{Gt+i}, v{Gt+i}, v{Oo+i}")
    rnd8(Gt, Tm)
    for i in range(8): e(f"v_mul_f32 v{S+i}, v{S+i}, v{Gt+i}")
    rnd8(S, Tm)
    for i in range(4): e(f"v_lshlrev_b32 v{Oo+2*i}, 16, v{XR+i}\nv_and_b32 v{Oo+2*i+1}, 0xffff0000, v{XR+i}")
    for i in range(8): e(f"v_add_f32 v{S+i}, v{S+i}, v{Oo+i}")
    for i in range(4): e(f"v_cvt_pk_bf16_f32 v{Tm+i}, v{S+2*i}, v{S+2*i+1}")
    e(f"v_permlane32_swap_b32 v{Tm}, v{Tm+2}\nv_permlane32_swap_b32 v{Tm+1}, v{Tm+3}")
    e(f"buffer_store_dwordx4 {vr(Tm,4)}, v23, {sr(S_A,4)}, {sSLOT} offen")
    g.st(11)
    if STAMP:
        e(f"s_waitcnt lgkmcnt(0)\nv_mov_b32 v2, {33<<20}\ns_lshl_b32 s6, {sW}, 6\ns_lshl_b32 s7, s2, 9\ns_add_u32 s6, s6, s7")
        for i in range(g.ns):
            e(f"s_sub_u32 s7, s{76+2*i}, s76\nv_mov_b32 v1, s7\nbuffer_store_dword v1, v2, {sr(S_WS,4)}, s6 offen offset:{4*i}")
        g.lab("NOST")
    if TL:
        e(f"s_waitcnt vmcnt(0)\ns_cmp_lg_u32 {sW}, 0\ns_cbranch_scc1 END")
        e("s_memrealtime s[4:5]\ns_memtime s[6:7]\ns_waitcnt lgkmcnt(0)")
        e(f"s_lshl_b32 s14, s2, 5\ns_add_u32 s14, s14, {32<<20}")
        e("v_mov_b32 v2, 0\nv_mov_b32 v4, s100\nv_mov_b32 v5, s101\nv_mov_b32 v6, s76\nv_mov_b32 v7, s77\nv_mov_b32 v8, s4\nv_mov_b32 v9, s5\nv_mov_b32 v10, s6\nv_mov_b32 v11, s7")
        e(f"buffer_store_dwordx4 v[4:7], v2, {sr(S_WS,4)}, s14 offen\nbuffer_store_dwordx4 v[8:11], v2, {sr(S_WS,4)}, s14 offen offset:16")
    g.lab("END")
    e("s_endpgm")
    g.lab("CODE_END")

PREFSZ = opt("PREFSZ", 24 * 1024 - 128); PREFW = opt("PREFW", 2)
def main():
    g = G(); e = g.e
    e("s_cmp_ge_u32 s2, 256\ns_cbranch_scc1 END")
    e("s_load_dwordx16 s[4:19], s[0:1], 0\ns_load_dwordx4 s[20:23], s[0:1], 64")
    if TL: e("s_memrealtime s[100:101]" + ("" if STAMP else "\ns_memtime s[76:77]"))
    g.st(0)
    e("v_and_b32 v1, 63, v0\nv_lshrrev_b32 v2, 6, v0")
    e(f"v_readfirstlane_b32 {sW}, v2")
    e(f"s_and_b32 {sI}, s2, 7\ns_lshr_b32 {sJ}, s2, 3")
    e(f"s_lshr_b32 {sRB}, {sI}, 2\ns_lshl_b32 {sRB}, {sRB}, 3\ns_and_b32 {sT0}, {sJ}, 7\ns_add_u32 {sRB}, {sRB}, {sT0}")
    e(f"s_and_b32 {sCB}, {sI}, 3\ns_lshl_b32 {sCB}, {sCB}, 2\ns_lshr_b32 {sT0}, {sJ}, 3\ns_add_u32 {sCB}, {sCB}, {sT0}")
    e(f"s_and_b32 {sRG}, {sW}, 3\ns_lshr_b32 {sQ}, {sRB}, 2\ns_cmp_ge_u32 {sW}, 4\ns_cbranch_scc1 CG1")
    phase1(g, 0)
    hook(g, 0)
    hook(g, 1)
    g.lab("CG1")
    g.A.vm_q = []; g.A.lds_q = []
    e("s_nop 3")
    phase1(g, 1)
    rest(g)
    body = g.A.finish()
    nm = NAME + "_kernel"
    out = ["; generated by dev/gen3.py", f"; @launch grid=(256,1,1) block=(512,1,1) lds={LDS_TOTAL}",
           '.amdgcn_target "amdgcn-amd-amdhsa--gfx950"\n.text', f".globl {nm}\n.p2align 8\n.type {nm},@function\n{nm}:"]
    out += body
    out.append('.section .rodata,"a"\n.p2align 6')
    out.append(f""".amdhsa_kernel {nm}
  .amdhsa_next_free_vgpr 256
  .amdhsa_next_free_sgpr 102
  .amdhsa_accum_offset 256
  .amdhsa_group_segment_fixed_size 0
  .amdhsa_kernarg_size 80
  .amdhsa_user_sgpr_count 2
  .amdhsa_user_sgpr_kernarg_segment_ptr 1
  .amdhsa_system_sgpr_workgroup_id_x 1
.end_amdhsa_kernel
""")
    open(sys.argv[1], "w").write("\n".join(out) + "\n")
main()
```

```python
import sys, os
sys.path.insert(0, os.path.dirname(os.path.abspath(__file__)))
from asmlib import Asm
NAME = "recurrent_scan__sliding_local_dilated__glu_gated_reglu__prompt"
OPT = dict(a.split("=") for a in sys.argv[2:] if "=" in a)
def opt(k, d): return type(d)(OPT.get(k, d))
def vr(b, n): return f"v[{b}:{b+n-1}]"
def sr(b, n): return f"s[{b}:{b+n-1}]"

STAMP = opt("STAMP", 0); SELWG = opt("SELWG", 0); SELW = opt("SELW", 0); TL = opt("TL", 0)
PDS = [opt("PD0", 7), opt("PD1", 7)]; BOFFS = [opt("BO0", 5), opt("BO1", 4)]; MF1 = opt("MF1", 1)
PREF = opt("PREF", 1); ADV = opt("ADV", 1); NEWB = opt("NEWB", 1); MB2 = [opt("MB0", 2), opt("MB1", 2)]; BOF = opt("BOF", 2)
PFC = [int(x) for x in opt("PFC", "0,2").split(",") if x != ""]; PFI = opt("PFI", 1)
PFN = len(PFC) * (3 - PFI)
sPFM, sPFO, sPFS = "s74", "s59", "s71"; vPF = 62
assert not (2 in PFC and 3 in PFC) and (not PFC or PFN in (4, 8))
STM = "sc0 sc1"
BAR = "s_sleep 10" if opt("NOBAR", 0) else "s_barrier"

WSL = 22656; XSL = 18432
X2 = 0; W0 = 18432; W1 = W0 + WSL; X0 = W1 + WSL; W2_ = X0 + XSL; W3 = W2_ + WSL; X1 = W3 + WSL
MISC = X1 + XSL
CST = MISC; CNT = MISC + 1472
WSLOT = [W0, W1, W2_, W3]; XSLOT = [X0, X1, X2]
GO, UO, QO = 0, 8320, 16512
AREA = [16384 * i for i in range(7)] + [147456]
QKV = 114688; QS = 208
SCR = 147456
LDS_TOTAL = 163840
assert MISC == 145920
WS_STATS = 10 << 20; WS_CS = 11 << 20; WS_DUMMY = 12 << 20; WS_FLG = 13 << 20; FLS = opt('FLS', 7); WS_SIZE = 64 << 20

S_X, S_A, S_B, S_WS, S_DBG, S_W2 = 24, 28, 32, 36, 40, 44
sW, sI, sJ, sRB, sCB, sRG, sQ = "s60", "s61", "s62", "s63", "s64", "s65", "s66"
sA, sB, sXo = "s48", "s49", "s50"
sMA, sMB = "s51", "s52"
sXa, sXb, sXc = "s53", "s54", "s55"
sCH, sNX, sIT = "s56", "s57", "s58"
sT0, sT1, sT2, sT3 = "s67", "s68", "s69", "s70"
sSLOT, sCP = "s71", "s72"
sW2o, sAo, sCNT, sMSK = "s73", "s74", "s75", "s59"
vD = 2
vRA = 8
vB = 18
vBl = 22; vH = 60; vHl = 23
FR = 200
BF = 48
HF = 160
ACC = 64
HACC = 144
T = 168

class G:
    def __init__(self):
        self.A = Asm(); self.ns = 0
    def e(self, t): self.A.e(t)
    def put(self, op):
        A = self.A
        if isinstance(op, tuple): (A.vm if op[0] == "vm" else A.ds)(op[1], op[2])
        elif isinstance(op, list):
            for o in op: self.put(o)
        else: A.e(op)
    def lab(self, l): self.A.raw(l + ":")
    def srd(self, b, lo, size):
        self.e(f"s_mov_b32 s{b}, s{lo}\ns_mov_b32 s{b+1}, s{lo+1}\ns_mov_b32 s{b+2}, {size}\ns_mov_b32 s{b+3}, 0x00020000")
    def st(self, i):
        if STAMP: self.e(f"s_memtime s[{76+2*i}:{77+2*i}]"); self.ns = max(self.ns, i + 1)

def bf16r(g, x, tmp):
    g.e(f"v_cvt_pk_bf16_f32 {tmp}, {x}, {x}\nv_lshlrev_b32 {x}, 16, {tmp}")

def ln_final(g, vs, vq, vm, vrr, t):
    e = g.e
    e(f"v_mul_f32 {vm}, 0x3b000000, {vs}\nv_mul_f32 {vq}, 0x3b000000, {vq}")
    e(f"v_fma_f32 {vq}, -{vm}, {vm}, {vq}\nv_max_f32 {vq}, 0, {vq}")
    bf16r(g, vm, t); bf16r(g, vq, t)
    e(f"v_add_f32 {vq}, 0x3727c5ac, {vq}")
    bf16r(g, vq, t)
    e(f"v_sqrt_f32 {vq}, {vq}")
    bf16r(g, vq, t)
    e(f"v_rcp_f32 {vrr}, {vq}")


ALLB = ["Q0", "Q1", "Q2", "G0", "G1", "G2", "G3", "G4", "G5", "G6", "G7"]
BLK = {0: ["Q0", "Q1", "Q2", "G0", "G1", "G2"], 1: ["G3", "G4", "G5", "G6", "G7", "G2"]}
S_U = 12; S_W2B = 4
sW2b, sT2b = "s20", "s21"
sMX = "s22"
def tcol(name): return 32 * int(name[1]) if name[0] == "Q" else 96 + 32 * int(name[1])
def lane_parts(e):
    e("""v_lshrrev_b32 v9, 5, v1
v_bfe_u32 v10, v1, 4, 1
v_bfe_u32 v11, v1, 2, 2
v_and_b32 v12, 3, v1
v_lshl_add_u32 v13, v9, 3, v11""")
    e(f"v_lshlrev_b32 v14, 8, v13\nv_mov_b32 v15, {UO}\nv_mad_u32_u24 v14, v10, v15, v14\nv_lshl_add_u32 v14, v12, 3, v14\nv_add_u32 v14, {W0+GO}, v14")
def xrot(): return f"s_mov_b32 {sT3}, {sXa}\ns_mov_b32 {sXa}, {sXb}\ns_mov_b32 {sXb}, {sXc}\ns_mov_b32 {sXc}, {sT3}"

mACC = 64; mFR = 32; mBF = 240; mRA = 2; mB = 20; mBl = 24; mST = 26
def mfma_path(g, ch):
    A = g.A; e = g.e; put = g.put
    blocks = BLK[ch]; L = f"M{ch}_"
    NB = 8; PDM = opt("PDM", 12); BO = opt("BO", 6); MAXF = opt("MAXF", 2)
    def ra(name):
        if name[0] == "Q": return 3, 64 * int(name[1])
        b = int(name[1]); return (b & 3), 128 * (b >> 2)
    seq = []
    for ks in range(2):
        for bi in range(6):
            for r in ([0, 1] if bi < 5 else [ch]): seq.append((6 * ks + bi, ks, bi, r))
    M = len(seq); assert M == 22
    first = {}; lastu = {}
    for m, (f, ks, bi, r) in enumerate(seq):
        first.setdefault(f, m); lastu[f] = m
    def acc(bi, r): return mACC + (32 * bi + 16 * r if bi < 5 else 160)
    lane_parts(e)
    los = [0, 1, 2] if ch == 0 else [0, 1, 2, 3]
    tmp = 40
    for lo in los: e(f"v_xor_b32 v15, {lo}, v11\nv_lshl_add_u32 v{tmp+lo}, v15, 5, v14")
    if ch == 0: e(f"v_mul_u32_u24 v15, 192, v13\nv_lshl_add_u32 v15, v10, 5, v15\nv_lshl_add_u32 v15, v12, 3, v15\nv_add_u32 v{tmp+3}, {W0+QO}, v15")
    e(f"v_and_b32 v15, 31, v1\nv_bfe_u32 v16, v1, 1, 3\nv_xor_b32 v16, v16, v9\ns_lshr_b32 {sT3}, {sRG}, 1\ns_lshl_b32 {sT3}, {sT3}, 6\ns_add_u32 {sT3}, {sT3}, 16\nv_add_u32 v15, {sT3}, v15\nv_lshlrev_b32 v15, 7, v15\nv_lshl_add_u32 v{mBl}, v16, 4, v15")
    for i in range(4): e(f"v_mov_b32 v{mRA+i}, v{tmp+i}\nv_add_u32 v{mRA+4+i}, {W2_-W0}, v{tmp+i}")
    e(f"s_mov_b32 {sXa}, {X0}\ns_mov_b32 {sXb}, {X1}\ns_mov_b32 {sXc}, {X2}\ns_mov_b32 {sIT}, 0")
    def xaddr(): return [f"v_add_u32 v{mB}, {sXa}, v{mBl}"] + [f"v_xor_b32 v{mB+i}, {32*i}, v{mB}" for i in range(1, 4)]
    put(xaddr())
    for i in range(176): e(f"v_mov_b32 v{mACC+i}, 0")
    e("s_waitcnt lgkmcnt(0)")
    g.srd(S_X, 4, 2048 * 1024); g.srd(S_WS, 22, WS_SIZE)
    p2setup(g, sW, S_W2, sW2o, sT2, True)
    e(f"s_add_u32 {sW2o}, {sW2o}, {16*8192}")
    e(f"s_lshl_b32 {sT0}, {sRB}, 7\ns_lshr_b32 {sT1}, {sRG}, 1\ns_lshl_b32 {sT1}, {sT1}, 6\ns_add_u32 {sT0}, {sT0}, {sT1}\ns_lshl_b32 {sT0}, {sT0}, 3\ns_add_u32 {sCH}, {sT0}, {WS_STATS}")
    e(f"v_and_b32 v25, 31, v1\nv_lshlrev_b32 v25, 3, v25")
    def frag_reads(c, f):
        ks, bi = divmod(f, 6); s = c & 3
        buf = mFR + 4 * ((c * 12 + f) % NB)
        ri, imm = ra(blocks[bi]); va = mRA + ri + (4 if s >= 2 else 0)
        stride = 192 if blocks[bi][0] == "Q" else 256
        return [("ds", f"ds_read_b64_tr_b16 {vr(buf+2*n,2)}, v{va} offset:{(s&1)*WSL + (16*ks+4*n)*stride + imm}", ("f", c, f)) for n in range(0 if opt("NORD", 0) else 2)]
    def b_read(c, ks, r):
        k4 = 2 * (c & 1) + ks
        return ("ds", f"ds_read_b128 {vr(mBF+8*ks+4*r,4)}, v{mB+k4} offset:{4096*r}", ("b", c, ks, r))
    e(f"s_setprio {opt('PRIO', 3)}")
    g.st(1)
    e("s_barrier")
    g.st(3)
    mb = M - BO
    def sched():
        nx = 0
        for it in range(3):
            out = {m: [] for m in range(M)}
            p = nx
            for m in range(M):
                n = 0
                while n < MAXF:
                    dc, f = divmod(p, 12)
                    if dc >= 2: break
                    if first[f] + 22 * dc > m + PDM: break
                    if dc == 1 and m < mb: break
                    q = p - NB
                    lu = lastu[q % 12] + 22 * (q // 12)
                    if lu >= m: break
                    out[m].append((dc, f)); p += 1; n += 1
            assert all(f < 12 for f in range(12)) and p >= 12
            nx = p - 12
        return out, nx
    SC, NX = sched()
    for m in range(mb, M): assert all(dc == 1 for dc, f in SC[m]), SC
    for m in range(mb, M):
        if m - mb < 2: put(b_read(0, 0, m - mb))
        for dc, ff in SC[m]: put(frag_reads(0, ff))
    q0 = list(A.lds_q)
    g.lab(L + "LOOP")
    if opt("ITST", 0): e("s_mov_b64 s[78:79], s[80:81]\ns_memtime s[80:81]")
    for c in range(4):
        for m, (f, ks, bi, r) in enumerate(seq):
            mf = f"v_mfma_f32_32x32x16_bf16 {vr(acc(bi, r),16)}, {vr(mFR + 4*((c*12+f) % NB),4)}, {vr(mBF+8*ks+4*r,4)}, {vr(acc(bi, r),16)}"
            if opt("NOMF", 0): mf = "s_nop 0"
            if m == mb:
                if opt("NOBAR", 0): A.wait(lds=[("f", c, f), ("b", c, ks, r)])
                else:
                    A.wait(lds_all=True)
                    e("s_barrier")
                e(mf)
                if c & 1: e(xrot()); put(xaddr())
                put(b_read((c + 1) & 3, 0, 0))
            if m == mb + 1: put(b_read((c + 1) & 3, 0, 1))
            if m in (1, 2): put(b_read(c, 1, m - 1))
            for dc, ff in SC[m]: put(frag_reads((c + dc) & 3, ff))
            if c == 1 and m == mb + 3:
                e(f"s_cmp_lg_u32 {sIT}, 3\ns_cbranch_scc1 {L}NOST")
                for rr in range(2): e(f"buffer_load_dwordx2 {vr(mST+2*rr,2)}, v25, {sr(S_WS,4)}, {sCH} offen offset:{256*rr} sc0 sc1")
                g.lab(L + "NOST")
            if m != mb:
                A.wait(lds=[("f", c, f), ("b", c, ks, r)])
                e(mf)
            nd = opt("DOTS", 0)
            for k in range(nd * m // M, nd * (m + 1) // M):
                opk = opt("OPK", 0); d = 10 + 2 * (k & 3)
                if opk == 0: e(f"v_dot2_f32_bf16 v{10+(k&3)}, v{mBF+8*ks+4*r+(k&3)}, v{mBF+8*ks+4*r+(k&3)}, v{10+(k&3)}")
                if opk == 1: e(f"v_pk_fma_f32 {vr(d,2)}, {vr(26,2)}, {vr(28,2)}, {vr(d,2)} op_sel_hi:[0,1,1] neg_lo:[1,0,0] neg_hi:[1,0,0]")
                if opk == 2: e(f"v_max_f32 v{d}, 0, v{d}")
                if opk == 3: e(f"v_cvt_pk_bf16_f32 v{d}, v{d}, v{d+1}")
                if opk == 4: e(f"v_pk_mul_f32 {vr(d,2)}, {vr(26,2)}, {vr(d,2)}")
    assert opt('NOBAR', 0) or A.lds_q == q0, (A.lds_q, q0)
    e(f"s_add_u32 {sIT}, {sIT}, 1\ns_cmp_lt_u32 {sIT}, 4\ns_cbranch_scc1 {L}LOOP")
    g.st(4)
    e("s_setprio 0")
    A.wait(lds_all=True)
    g.st(5)
    e("s_waitcnt vmcnt(0)")
    e(f"v_lshrrev_b32 v9, 5, v1\nv_lshlrev_b32 v9, 4, v9\nv_add_u32 v9, {CST}, v9\nv_lshlrev_b32 v8, 4, v1")
    for rr in range(2): e(f"v_mul_f32 v{mST+4+rr}, v{mST+2*rr+1}, v{mST+2*rr+1}")
    e(f"s_lshl_b32 {sT0}, {sRB}, 2\ns_and_b32 {sT1}, {sRG}, 2\ns_add_u32 {sT0}, {sT0}, {sT1}\ns_mul_i32 {sT0}, {sT0}, 144\ns_lshl_b32 {sT1}, {sCB}, 3\ns_add_u32 {sT1}, {sT1}, {sT0}\ns_add_u32 {sT1}, {sT1}, 32\ns_lshl_b32 {sT1}, {sT1}, 10\ns_add_u32 {sT0}, {sT1}, 4096")
    e(f"v_add_u32 v10, {144*1024}, v8")
    CBF = [32, 48, 240]
    order = [i for i, n in enumerate(blocks) if n[0] == "G"] + [i for i, n in enumerate(blocks) if n[0] == "Q"]
    def csr(oi):
        for q in range(4): A.ds(f"ds_read_b128 {vr(CBF[oi%3]+4*q,4)}, v9 offset:{4*tcol(blocks[order[oi]]) + 32*q}", ("c", oi))
    e(f"s_lshr_b32 {sT3}, {sRG}, 1\ns_lshl_b32 {sT3}, {sT3}, 6\ns_add_u32 {sT3}, {sT3}, 16\nv_and_b32 v11, 31, v1\nv_add_u32 v11, {sT3}, v11\nv_mul_u32_u24 v11, {QS}, v11\nv_lshrrev_b32 v12, 5, v1\nv_lshl_add_u32 v11, v12, 4, v11\nv_add_u32 v11, {QKV}, v11")
    e(f"s_cmp_lt_u32 {sCB}, 14\ns_cbranch_scc0 {L}SKIPG")
    ngb = sum(1 for n in blocks if n[0] == "G")
    for oi in range(min(3, ngb)): csr(oi)
    for oi, bi in enumerate(order):
        cb_ = CBF[oi % 3]; nm = blocks[bi]
        if nm == "Q0":
            g.lab(L + "SKIPG")
            for k in range(3): csr(oi + k)
        A.wait(lds=[("c", oi)])
        rows = [0, 1] if bi < 5 else [ch]
        for r in rows:
            a = acc(bi, r); vM = mST + 2 * r
            for i in range(8):
                e(f"v_pk_fma_f32 {vr(a+2*i,2)}, {vr(vM,2)}, {vr(cb_+2*i,2)}, {vr(a+2*i,2)} op_sel_hi:[0,1,1] neg_lo:[1,0,0] neg_hi:[1,0,0]")
        if nm[0] == "G" and oi + 3 < ngb: csr(oi + 3)
        for r in rows:
            a = acc(bi, r); vM = mST + 2 * r
            if nm[0] == "G":
                gb = int(nm[1])
                for i in range(8): e(f"v_max_f32 v{a+i}, 0, v{a+i}")
                for i in range(4): e(f"v_pk_mul_f32 {vr(a+8+2*i,2)}, {vr(mST+4,2)}, {vr(a+8+2*i,2)} op_sel:[{r},0] op_sel_hi:[{r},1]")
                for i in range(4): e(f"v_pk_mul_f32 {vr(a+2*i,2)}, {vr(a+2*i,2)}, {vr(a+8+2*i,2)}")
                for i in range(4): e(f"v_cvt_pk_bf16_f32 v{a+8+i}, v{a+2*i}, v{a+2*i+1}")
                A.vm(f"buffer_store_dwordx4 {vr(a+8,4)}, v{8 if r == 0 else 10}, {sr(S_WS,4)}, {sT1 if gb < 4 else sT0} offen offset:{1024*(gb%4)} {STM}", "hs")
            else:
                for i in range(8): e(f"v_pk_mul_f32 {vr(a+2*i,2)}, {vr(vM,2)}, {vr(a+2*i,2)} op_sel:[1,0] op_sel_hi:[1,1]")
                for i in range(8): e(f"v_cvt_pk_bf16_f32 v{a+i}, v{a+2*i}, v{a+2*i+1}")
                for h in range(2): A.ds(f"ds_write_b128 v11, {vr(a+4*h,4)} offset:{64*bi+32*h+32*QS*r}", "qw")
    if ch == 1: g.lab(L + "SKIPG")
    p2lane(g)
    A.wait(lds_all=True)
    e("s_branch ATT")

hRA = 11; hCS = 13; hHl = 18; hH = 19
def helper_path(g):
    A = g.A; e = g.e; put = g.put
    L = "H_"
    e(f"v_lshrrev_b32 v28, 4, v1\nv_and_b32 v29, 15, v1\nv_lshlrev_b32 v30, 1, v28\nv_xor_b32 v29, v29, v30")
    e(f"v_mul_u32_u24 v30, 3584, v28\nv_lshl_add_u32 v2, v29, 4, v30\nv_add_u32 v3, {4*3584}, v2")
    e(f"s_lshl_b32 {sT1}, {sRB}, 7\ns_lshl_b32 {sT3}, {sRG}, 5\ns_add_u32 {sT1}, {sT1}, {sT3}")
    e(f"v_lshrrev_b32 v29, 3, v1\nv_add_u32 v29, {sT1}, v29\nv_and_b32 v30, 7, v1\nv_xor_b32 v30, v30, v28\nv_lshlrev_b32 v29, 10, v29\nv_lshl_add_u32 v7, v30, 4, v29")
    e(f"v_xor_b32 v29, 64, v7\nv_add_u32 v8, 8192, v29\nv_add_u32 v9, 16384, v7\nv_add_u32 v10, 24576, v29")
    e(f"s_lshl_b32 {sT0}, {sQ}, 7\ns_lshl_b32 {sT1}, {sRG}, 3\ns_add_u32 {sT0}, {sT0}, {sT1}\ns_mul_i32 {sA}, {sT0}, 3584\ns_lshl_b32 {sT1}, {sCB}, 8\ns_add_u32 {sA}, {sA}, {sT1}")
    e(f"s_lshl_b32 {sMA}, {sRG}, 11\ns_lshl_b32 {sXo}, {sQ}, 8")
    e(f"s_cmp_lt_u32 {sCB}, 14\ns_cselect_b32 {sT2}, {512*3584}, 0")
    e(f"s_mul_i32 {sB}, {sT0}, 3072\ns_lshl_b32 {sT1}, {sCB}, 6\ns_add_u32 {sB}, {sB}, {sT1}\ns_mul_i32 {sMB}, {sRG}, 1536")
    e(f"s_lshl_b32 {sCP}, {sRG}, 12\ns_add_u32 {sCP}, {sCP}, 2048")
    for n in range(2):
        e("v_mov_b32 v29, v1" if n == 0 else "v_add_u32 v29, 64, v1")
        e(f"""v_mul_u32_u24 v30, 43, v29
v_lshrrev_b32 v30, 9, v30
v_mul_u32_u24 v31, 12, v30
v_sub_u32 v31, v29, v31
v_mul_u32_u24 v30, 3072, v30
v_lshrrev_b32 v27, 2, v31
v_lshl_add_u32 v30, v27, 10, v30
v_and_b32 v31, 3, v31
v_lshl_add_u32 v{4+n}, v31, 4, v30""")
    e(f"s_lshl_b32 {sT1}, {sRG}, 2\nv_lshrrev_b32 v29, 3, v1\nv_add_u32 v29, {sT1}, v29\nv_bfe_u32 v30, v29, 1, 3\nv_and_b32 v31, 7, v1\nv_xor_b32 v30, v30, v31")
    e(f"s_lshl_b32 {sT1}, {sRB}, 7\ns_sub_u32 {sT1}, {sT1}, 16\nv_add_u32 v29, {sT1}, v29\nv_max_i32 v29, 0, v29\nv_lshlrev_b32 v29, 10, v29\nv_lshl_add_u32 v6, v30, 4, v29")
    e("s_waitcnt lgkmcnt(0)")
    g.srd(S_X, 4, 2048 * 1024)
    e(f"s_mov_b32 s{S_A}, s12\ns_mov_b32 s{S_A+1}, s13\ns_mov_b32 s{S_A+2}, {sT2}\ns_mov_b32 s{S_A+3}, 0x00020000")
    e(f"s_mov_b32 s{S_U}, s14\ns_mov_b32 s{S_U+1}, s15\ns_mov_b32 s{S_U+2}, {sT2}\ns_mov_b32 s{S_U+3}, 0x00020000")
    g.srd(S_B, 6, 512 * 3072)
    g.srd(S_WS, 22, WS_SIZE)
    g.srd(S_DBG, 20, 256)
    e(f"s_mov_b32 {sMX}, {sCP}")
    g.st(1)
    def ld(v, srd, so, tag): return ("vm", f"buffer_load_dwordx4 v{v}, {sr(srd,4)}, {so} offen lds", tag)
    def xg(xs, tag):
        u = [f"s_add_u32 {sT0}, {sMX}, {xs}"]
        for n in range(4): u += [f"s_add_u32 m0, {sT0}, {1024*n}", ld(7 + n, S_X, sXo, tag)]
        u += [f"s_lshl_b32 {sT0}, {sRG}, 9\ns_add_u32 m0, {sT0}, {xs}\ns_mov_b32 exec_hi, 0", ld(6, S_X, sXo, tag),
              f"s_mov_b64 exec, -1\ns_add_u32 {sXo}, {sXo}, {128*ADV}\ns_and_b32 {sXo}, {sXo}, 1023"]
        return u
    def wg(slot, tag):
        b = WSLOT[slot]
        q = [f"s_add_u32 m0, {sMB}, {b+QO}", ld(4, S_B, sB, tag),
                f"s_add_u32 m0, {sMB}, {b+QO+1024}\ns_mov_b32 exec_hi, 0", ld(5, S_B, sB, tag), f"s_mov_b64 exec, -1\ns_add_u32 {sB}, {sB}, {32*3072*ADV}"]
        gu = [f"s_add_u32 m0, {sMA}, {b+GO}", ld(2, S_A, sA, tag), f"s_add_u32 m0, {sMA}, {b+UO}", ld(2, S_U, sA, tag),
                f"s_add_u32 m0, {sMA}, {b+GO+1024}", ld(3, S_A, sA, tag), f"s_add_u32 m0, {sMA}, {b+UO+1024}", ld(3, S_U, sA, tag),
                f"s_add_u32 {sA}, {sA}, {32*3584*ADV}"]
        if opt("NODMA", 0) & 4: q = []
        if opt("NODMA", 0) & 8: gu = []
        return q + gu
    nW, nX = 6, 5
    if opt('NODMA', 0) & 4: nW -= 2
    if opt('NODMA', 0) & 8: nW -= 4
    if opt('NODMA', 0) & 2: nXl = 0
    else: nXl = nX
    put(xg(X0, "g0")); put(wg(0, "g0"))
    e(f"v_lshlrev_b32 v29, 4, v1\ns_lshl_b32 {sT1}, s2, 2\ns_add_u32 {sT1}, {sT1}, {sRG}\ns_lshl_b32 {sT2}, {sT1}, 11")
    for k in range(2): A.vm(f"buffer_load_dwordx4 {vr(T+4*k,4)}, v29, {sr(S_X,4)}, {sT2} offen offset:{1024*k}", "sx")
    put(wg(1, "d")); put(xg(X1, "d")); put(wg(2, "d")); put(wg(3, "d")); put(xg(X2, "d"))
    e("v_mov_b32 v40, v9\nv_mov_b32 v41, v10")
    lane_parts(e)
    for lo in range(4): e(f"v_xor_b32 v15, {lo}, v11\nv_lshl_add_u32 v{44+lo}, v15, 5, v14")
    e(f"v_mul_u32_u24 v15, 192, v13\nv_lshl_add_u32 v15, v10, 5, v15\nv_lshl_add_u32 v15, v12, 3, v15\nv_add_u32 v48, {W0+QO}, v15")
    e(f"v_lshl_add_u32 v15, v28, 3, v11\nv_mul_u32_u24 v15, 192, v15\nv_lshl_add_u32 v15, v12, 3, v15\ns_lshl_b32 {sT3}, {sRG}, 5\ns_add_u32 {sT3}, {sT3}, {W0+QO+64}\nv_add_u32 v49, {sT3}, v15")
    e(f"v_and_b32 v15, 15, v1\nv_lshrrev_b32 v16, 1, v15\nv_xor_b32 v16, v16, v28\nv_lshlrev_b32 v15, 7, v15\nv_lshl_add_u32 v{hHl}, v16, 4, v15")
    e(f"v_mov_b32 v9, v40\nv_mov_b32 v10, v41\nv_mov_b32 v{hRA}, v49\nv_add_u32 v{hRA+1}, {W2_-W0}, v49")
    for i in range(5): e(f"v_mov_b32 v{hCS+i}, v{44+i}")
    e(f"s_mov_b32 {sXa}, {X0}\ns_mov_b32 {sXb}, {X1}\ns_mov_b32 {sXc}, {X2}\ns_mov_b32 {sCH}, 0\ns_and_b32 {sNX}, {sRB}, 3\ns_mov_b32 {sIT}, 0\ns_mov_b32 {sCNT}, 0")
    def xaddr(): return [f"v_add_u32 v{hH}, {sXa}, v{hHl}", f"v_xor_b32 v{hH+1}, 64, v{hH}"]
    put(xaddr())
    for i in range(4): e(f"v_mov_b32 v{HACC+i}, 0")
    if PFC:
        e(f"s_mul_i32 {sT0}, {sJ}, 448\ns_mul_i32 {sT3}, {sRG}, 112\ns_add_u32 {sT0}, {sT0}, {sT3}\nv_add_u32 v{vPF}, {sT0}, v1\nv_lshlrev_b32 v{vPF}, 7, v{vPF}")
        e(f"s_lshl_b32 {sT0}, {sJ}, 7\ns_lshl_b32 {sT3}, {sRG}, 5\ns_add_u32 {sT0}, {sT0}, {sT3}\nv_min_u32 v{vPF-1}, 7, v1\nv_add_u32 v{vPF-1}, {sT0}, v{vPF-1}\nv_lshlrev_b32 v{vPF-1}, 7, v{vPF-1}")
        g.srd(S_W2, 16, 1792 * 1024); g.srd(S_W2B, 8, 512 * 1024)
        e(f"s_mov_b32 {sPFM}, 1\ns_and_b32 {sPFO}, {sI}, {PFN-1}")
    e(f"v_mov_b32 v{T+9}, {CNT}\nv_mov_b32 v{T+10}, 0\nv_mov_b32 v{T+11}, 0\nv_mov_b32 v{T+12}, 0\nv_mov_b32 v{T+13}, 0")
    A.ds(f"ds_write_b128 v{T+9}, {vr(T+10,4)}", "z")
    A.wait(vm=["g0"], lds_all=True)
    e("s_barrier")
    g.st(3)
    A.wait(vm=["sx"])
    g.st(2)
    S0 = T + 16
    e(f"v_mov_b32 v{T+8}, 0x3f803f80")
    for i in range(4):
        for k in range(2):
            e(f"v_dot2_f32_bf16 v{S0+2*k}, v{T+4*k+i}, v{T+8}, {'0' if i == 0 else f'v{S0+2*k}'}")
            e(f"v_dot2_f32_bf16 v{S0+2*k+1}, v{T+4*k+i}, v{T+4*k+i}, {'0' if i == 0 else f'v{S0+2*k+1}'}")
    for sh in (8, 4, 2, 1):
        for k in range(4): e(f"v_add_f32_dpp v{S0+k}, v{S0+k}, v{S0+k} row_ror:{sh} row_mask:0xf bank_mask:0xf")
    for sw in (16, 32):
        for k in range(4): e(f"v_mov_b32 v{S0+4+k}, v{S0+k}")
        for k in range(4): e(f"v_permlane{sw}_swap_b32 v{S0+k}, v{S0+4+k}")
        for k in range(4): e(f"v_add_f32 v{S0+k}, v{S0+k}, v{S0+4+k}")
    for k in range(2): ln_final(g, f"v{S0+2*k}", f"v{S0+2*k+1}", f"v{S0+4+2*k}", f"v{S0+5+2*k}", f"v{T+k}")
    e(f"s_lshl_b32 {sT1}, {sT1}, 4\ns_add_u32 {sT1}, {sT1}, {WS_STATS}\ns_mov_b64 exec, 1")
    A.vm(f"buffer_store_dwordx4 {vr(S0+4,4)}, v{T+10}, {sr(S_WS,4)}, {sT1} offen {STM}", "ss")
    e(f"s_lshl_b32 {sT0}, {sI}, 2\ns_and_b32 {sT1}, {sJ}, 3\ns_add_u32 {sT0}, {sT0}, {sT1}\ns_lshl_b32 {sT0}, {sT0}, 3\ns_lshr_b32 {sT1}, {sJ}, 2\ns_add_u32 {sT0}, {sT0}, {sT1}\ns_lshl_b32 {sT0}, {sT0}, {FLS}\ns_add_u32 {sT0}, {sT0}, {WS_FLG}")
    e(f"s_cmp_lg_u32 {sW}, 3\ns_cbranch_scc1 NOZF")
    e(f"buffer_store_dwordx4 {vr(T+10,4)}, v{T+10}, {sr(S_WS,4)}, {sT0} offen {STM}")
    g.lab("NOZF")
    e("s_mov_b64 exec, -1")
    def work(c):
        s = c & 3; va = hRA + (1 if s >= 2 else 0)
        for n in range(2): A.ds(f"ds_read_b64_tr_b16 {vr(HF+2*n,2)}, v{va} offset:{(s&1)*WSL + 4*n*192}", "h")
        A.ds(f"ds_read_b128 {vr(HF+4,4)}, v{hH+(c&1)}", "h")
    def hm():
        A.wait(lds_all=True)
        e(f"v_mfma_f32_16x16x32_bf16 {vr(HACC,4)}, {vr(HF,4)}, {vr(HF+4,4)}, {vr(HACC,4)}")
    def pfu():
        return [f"s_mul_i32 {sT0}, {sPFO}, {28*128}\ns_lshl_b32 {sT1}, {sPFO}, 10\ns_mov_b32 exec_lo, {sPFM}\ns_mov_b32 exec_hi, 0",
                ("vm", f"buffer_load_dword v{vPF+1}, v{vPF}, {sr(S_W2,4)}, {sT0} offen", "pf"),
                ("vm", f"buffer_load_dword v{vPF+1}, v{vPF-1}, {sr(S_W2B,4)}, {sT1} offen", "pf"),
                f"s_mov_b64 exec, -1\ns_add_u32 {sPFO}, {sPFO}, 1\ns_and_b32 {sPFO}, {sPFO}, {PFN-1}"]
    assert PFN == 4 or not PFC
    ev = [("w", 1)] * nW + ["x"] * nX + [("w", 2)] * nW + [("w", 3)] * nW + ["x"] * nX
    allowed = [63] * 4
    for k in range(12):
        idx = max(i for i, t in enumerate(ev) if t == ("w", k + 1))
        allowed[k & 3] = min(allowed[k & 3], len(ev) - 1 - idx - opt("VMS", 0))
        ev += [("w", k + 4)] * nW + (["x"] * nXl if (k & 1 and k < 11) else []) + (["pf"] * 2 if (k & 3) in PFC else [])
    g.lab(L + "LOOP")
    e(f"s_add_u32 {sT0}, {sIT}, {sQ}\ns_cmp_eq_u32 {sT0}, 3\ns_cselect_b32 {sT0}, {512*3584*ADV}, 0\ns_cselect_b32 {sT1}, {512*3072*ADV}, 0\ns_sub_u32 {sB}, {sB}, {sT1}\ns_sub_u32 {sA}, {sA}, {sT0}")
    for c in range(4):
        work(c)
        e(f"s_cmp_eq_u32 {sCH}, {sNX}\ns_mov_b32 {sCP}, {c}\ns_cbranch_scc1 {L}HOOK" if not opt("NOHOOK", 0) else "s_nop 0")
        g.lab(f"{L}RET{c}")
        hm()
        e(f"s_waitcnt vmcnt({allowed[c]})\n{BAR}\ns_add_u32 {sCH}, {sCH}, 1")
        if not opt("NODMA", 0) & 1: put(wg(c, "d"))
        if c & 1:
            e(xrot()); put(xaddr())
            if c == 3: e(f"s_cmp_eq_u32 {sIT}, 2\ns_cbranch_scc1 {L}XS1")
            if not opt("NODMA", 0) & 2: put(xg(sXc, "d"))
            if c == 3: g.lab(L + "XS1")
        if c in PFC: put(pfu())
    e(f"s_add_u32 {sIT}, {sIT}, 1")
    if PFC: e(f"s_cmp_ge_u32 {sIT}, {PFI}\ns_cselect_b32 {sPFM}, {hex((1 << 28) - 1)}, 1")
    e(f"s_cmp_lt_u32 {sIT}, 3\ns_cbranch_scc1 {L}LOOP")
    g.st(4)
    pfq = lambda c: (["pf"] * 2 if c in PFC else [])
    A.vm_q = [("w", 13)] * (nW + nX) + pfq(1) + [("w", 14)] * nW + pfq(2) + [("w", 15)] * nW + pfq(3)
    A.lds_q = []
    FL = T; CSR = T + 4; STT = T + 28; CA = 3
    e(f"v_lshlrev_b32 v{vPF}, 2, v1")
    A.vm(f"buffer_load_dword v{FL}, v{vPF}, {sr(S_DBG,4)}, 0 offen sc0 sc1", "fl")
    work(0)
    e(f"s_add_u32 {sCNT}, {sW}, 4")
    p2setup(g, sCNT, S_W2B, sW2b, sT2b, False)
    p2setup(g, sW, S_W2, sW2o, sT2, True)
    p2lane(g)
    def w2(j):
        o = []
        for srd, so, mo in ((S_W2, sW2o, sT2), (S_W2B, sW2b, sT2b)):
            for h in range(2):
                o += [f"s_add_u32 m0, {mo}, {AREA[AMAP[j]]+1024*h}", ("vm", f"buffer_load_dwordx4 v{vD}, {sr(srd,4)}, {so} offen lds", ("w2", j)), f"s_add_u32 {so}, {so}, 8192"]
        return o
    put(w2(0)); put(w2(1))
    hm()
    A.wait(vm=[("w", 13)]); e(BAR)
    put(w2(2))
    work(1)
    A.wait(vm=["fl"])
    e(f"s_mov_b32 {sT0}, 0")
    g.lab(L + "F1")
    e(f"v_and_b32 v{FL}, 0x01010101, v{FL}\nv_cmp_ne_u32 vcc, 0x01010101, v{FL}\ns_add_u32 {sT0}, {sT0}, 1")
    e(f"s_cbranch_vccz {L}F1OK\ns_cmp_gt_u32 {sT0}, {opt('F1TO', 100000)}\ns_cbranch_scc1 {L}F1OK")
    e(f"s_sleep 8\nbuffer_load_dword v{FL}, v{vPF}, {sr(S_DBG,4)}, 0 offen sc0 sc1\ns_waitcnt vmcnt(0)\ns_branch {L}F1")
    g.lab(L + "F1OK")
    e(f"s_mul_i32 {sT0}, {sCB}, 22528\ns_add_u32 {sT0}, {sT0}, {WS_CS}\ns_mul_i32 {sT1}, {sRG}, 384")
    for a in range(6): e(f"v_add_u32 v{CA+a}, {sT1}, v1" if a == 0 else f"v_add_u32 v{CA+a}, 64, v{CA+a-1}")
    for a in range(6):
        e(f"v_min_u32 v{CA+a}, 1408, v{CA+a}\nv_lshlrev_b32 v9, 4, v{CA+a}")
        A.vm(f"buffer_load_dwordx4 {vr(CSR+4*a,4)}, v9, {sr(S_WS,4)}, {sT0} offen sc0 sc1", "cs")
    e(f"s_lshl_b32 {sT0}, {sRB}, 7\ns_sub_u32 {sT0}, {sT0}, 16\nv_and_b32 v9, 15, v1\nv_add_u32 v9, {sT0}, v9\nv_max_i32 v9, 0, v9\nv_lshlrev_b32 v9, 3, v9\ns_mov_b32 {sT1}, {WS_STATS}")
    A.vm(f"buffer_load_dwordx2 {vr(STT,2)}, v9, {sr(S_WS,4)}, {sT1} offen sc0 sc1", "cs")
    hm()
    A.wait(vm=[("w", 14)]); e(BAR)
    e(xrot()); put(xaddr())
    put(w2(3)); put(w2(4)); put(w2(5))
    work(2); hm()
    A.wait(vm=[("w", 15)]); e(BAR)
    put(w2(6))
    work(3)
    A.wait(vm=["cs"])
    for sh in (8, 4, 2, 1):
        for k in range(24): e(f"v_add_f32_dpp v{CSR+k}, v{CSR+k}, v{CSR+k} row_ror:{sh} row_mask:0xf bank_mask:0xf")
    for a in range(6):
        e(f"v_and_b32 v{CA+a}, 0xfffffff0, v{CA+a}\nv_add_u32 v{CA+a}, {CST}, v{CA+a}")
        A.ds(f"ds_write_b128 v{CA+a}, {vr(CSR+4*a,4)}", "csw")
    hm()
    e(BAR)
    g.st(5)
    put(w2(7))
    e(f"v_lshrrev_b32 v10, 4, v1\nv_lshlrev_b32 v10, 4, v10\ns_lshl_b32 {sT3}, {sRG}, 6\ns_add_u32 {sT3}, {sT3}, {CST+128}\nv_add_u32 v10, {sT3}, v10\nv_lshlrev_b32 v8, 4, v1")
    A.ds(f"ds_read_b128 {vr(HF,4)}, v10", "ch")
    A.wait(lds=["ch"])
    for i in range(4): e(f"v_fma_f32 v{HACC+i}, -v{STT}, v{HF+i}, v{HACC+i}")
    for i in range(4): e(f"v_mul_f32 v{HACC+i}, v{STT+1}, v{HACC+i}")
    e(f"v_cvt_pk_bf16_f32 v{HF+4}, v{HACC}, v{HACC+1}\nv_cvt_pk_bf16_f32 v{HF+5}, v{HACC+2}, v{HACC+3}")
    e(f"v_and_b32 v10, 15, v1\nv_mul_u32_u24 v10, {QS}, v10\nv_bfe_u32 v12, v1, 4, 1\nv_lshl_add_u32 v10, v12, 4, v10\nv_lshrrev_b32 v12, 5, v1\nv_lshl_add_u32 v10, v12, 3, v10")
    e(f"s_lshl_b32 {sT3}, {sRG}, 5\ns_add_u32 {sT3}, {sT3}, {QKV+64}\nv_add_u32 v10, {sT3}, v10")
    A.ds(f"ds_write_b64 v10, {vr(HF+4,2)}", "qw")
    A.wait(lds_all=True, vm=[("w2", 7)])
    e("s_branch ATT")

def hook(g):
    A = g.A; e = g.e; L = "H_"
    g.lab(L + "HOOK")
    e(f"s_cmp_lg_u32 {sCNT}, 0\ns_cbranch_scc1 {L}HK2")
    e(f"s_mul_i32 {sT0}, {sCP}, {WSL}\ns_cmp_ge_u32 {sCP}, 2\ns_cselect_b32 {sT1}, {XSL}, 0\ns_add_u32 {sT0}, {sT0}, {sT1}")
    e(f"s_lshr_b32 {sT1}, {sRG}, 1\ns_lshl_b32 {sT1}, {sT1}, 2\ns_and_b32 {sT2}, {sRG}, 1\ns_add_u32 {sT1}, {sT1}, {sT2}")
    e(f"s_lshl_b32 {sT2}, {sT1}, 10\ns_add_u32 {sT2}, {sT2}, {sT0}\ns_mul_i32 {sT1}, {sT1}, 768\ns_add_u32 {sT1}, {sT1}, {sT0}")
    for i in range(5): e(f"v_add_u32 v{T+i}, {sT1 if i == 4 else sT2}, v{hCS+i}")
    D = T + 8; O = T + 32
    for b, nm in enumerate(ALLB):
        k = int(nm[1])
        ri, imm = (4, 64 * k) if nm[0] == "Q" else (k & 3, 128 * (k >> 2))
        e(f"ds_read_b64_tr_b16 {vr(D+2*b,2)}, v{T+ri} offset:{imm}")
    e(f"v_mov_b32 v{T+5}, 0x3f803f80\nv_and_b32 v{T+6}, 31, v1\nv_lshlrev_b32 v{T+6}, 4, v{T+6}\ns_lshl_b32 {sT0}, {sRG}, 2\ns_add_u32 {sT0}, {sT0}, {SCR}\nv_add_u32 v{T+6}, {sT0}, v{T+6}")
    e("s_waitcnt lgkmcnt(0)")
    n = 11
    for b in range(n): e(f"v_dot2_f32_bf16 v{O+b}, v{D+2*b}, v{T+5}, 0")
    for b in range(n): e(f"v_dot2_f32_bf16 v{O+b}, v{D+1+2*b}, v{T+5}, v{O+b}")
    for b in range(n): e(f"v_mov_b32 v{D+b}, v{O+b}")
    for b in range(n): e(f"v_permlane32_swap_b32 v{O+b}, v{D+b}")
    for b in range(n): e(f"v_add_f32 v{O+b}, v{O+b}, v{D+b}")
    for b, nm in enumerate(ALLB): e(f"ds_write_b32 v{T+6}, v{O+b} offset:{16*tcol(nm)}")
    e(f"s_add_u32 {sNX}, {sNX}, 1\ns_cmp_eq_u32 {sW}, 3\ns_cselect_b32 {sNX}, {sNX}, 99\ns_mov_b32 {sCNT}, 1\ns_branch {L}HKR")
    g.lab(L + "HK2")
    e(f"s_cmp_lg_u32 {sCNT}, 1\ns_cbranch_scc1 {L}HK3")
    e(f"v_lshlrev_b32 v{T}, 4, v1\nv_add_u32 v{T}, {SCR}, v{T}")
    for a in range(6): e(f"ds_read_b128 {vr(T+4+4*a,4)}, v{T} offset:{1024*a}")
    e(f"v_lshrrev_b32 v{T+1}, 2, v1\nv_and_b32 v{T+2}, 3, v1\nv_lshlrev_b32 v{T+1}, 8, v{T+1}\nv_lshl_add_u32 v{T+1}, v{T+2}, 2, v{T+1}")
    e(f"s_mul_i32 {sT0}, {sCB}, 22528\ns_lshl_b32 {sT1}, {sRB}, 4\ns_add_u32 {sT0}, {sT0}, {sT1}\ns_add_u32 {sT0}, {sT0}, {WS_CS}\ns_waitcnt lgkmcnt(0)")
    for a in range(6):
        b = T + 4 + 4 * a
        e(f"v_add_f32 v{b}, v{b}, v{b+1}\nv_add_f32 v{b+2}, v{b+2}, v{b+3}")
    for a in range(6):
        b = T + 4 + 4 * a
        e(f"v_add_f32 v{b}, v{b}, v{b+2}")
    for a in range(6):
        b = T + 4 + 4 * a
        if a == 5: e("s_mov_b32 exec_hi, 0")
        e(f"buffer_store_dword v{b}, v{T+1}, {sr(S_WS,4)}, {sT0} offen {STM}\ns_add_u32 {sT0}, {sT0}, 4096")
    e(f"s_mov_b64 exec, -1\ns_add_u32 {sNX}, {sNX}, 4\ns_mov_b32 {sCNT}, 2\ns_branch {L}HKR")
    g.lab(L + "HK3")
    e(f"s_lshl_b32 {sT0}, {sRB}, 4\ns_add_u32 {sT0}, {sT0}, {sCB}\nv_mov_b32 v{T}, 0\nv_mov_b32 v{T+1}, 1\ns_mov_b64 exec, 1\ns_mov_b32 {sNX}, 99")
    e(f"buffer_store_byte v{T+1}, v{T}, {sr(S_DBG,4)}, {sT0} offen sc0 sc1\ns_mov_b64 exec, -1")
    g.lab(L + "HKR")
    e("s_nop 1")
    for c in range(3): e(f"s_cmp_eq_u32 {sCP}, {c}\ns_cbranch_scc1 {L}RET{c}")
    e(f"s_branch {L}RET3")

AMAP = [7, 0, 1, 2, 3, 4, 5, 6]
sRB2, sCB2, sN = "s53", "s54", "s55"
sRB2, sCB2, sN, sST = "s48", "s49", "s51", "s52"
def p2setup(g, W, SRD, sOff, sM0, own):
    e = g.e
    e(f"s_lshl_b32 {sRB2}, {sI}, 2\ns_and_b32 {sT0}, {sJ}, 3\ns_add_u32 {sRB2}, {sRB2}, {sT0}\ns_lshr_b32 {sCB2}, {sJ}, 2")
    e(f"s_mul_i32 {sST}, {W}, 18\ns_sub_i32 {sT0}, {W}, 2\ns_max_i32 {sT0}, {sT0}, 0\ns_min_i32 {sT0}, {sT0}, 2\ns_lshl_b32 {sT0}, {sT0}, 1\ns_add_u32 {sST}, {sST}, {sT0}")
    if own: e(f"s_lshr_b32 {sT0}, {W}, 1\ns_cmp_eq_u32 {sT0}, 1\ns_cselect_b32 {sN}, 20, 18\ns_add_u32 {sAo}, {sST}, 32\ns_mov_b32 {sMSK}, 0x02020202")
    e(f"s_sub_u32 {sT0}, {W}, 6\ns_lshl_b32 {sT0}, {sT0}, 4\ns_mov_b32 s{SRD+2}, {1792*1024}\ns_cmp_ge_u32 {W}, 6")
    e(f"s_cselect_b32 {sST}, {sT0}, {sST}")
    if own: e(f"s_cselect_b32 {sN}, 16, {sN}\ns_cselect_b32 {sAo}, {sT0}, {sAo}\ns_cselect_b32 {sMSK}, 0x04040404, {sMSK}")
    e(f"s_cselect_b32 s{SRD}, s8, s16\ns_cselect_b32 s{SRD+1}, s9, s17\ns_cselect_b32 s{SRD+2}, {512*1024}, s{SRD+2}\ns_mov_b32 s{SRD+3}, 0x00020000")
    e(f"s_lshl_b32 {sOff}, {sST}, 14\ns_lshl_b32 {sT0}, {sCB2}, 7\ns_add_u32 {sOff}, {sOff}, {sT0}\ns_lshl_b32 {sM0}, {W}, 11")
    if own: e(f"s_mul_i32 {sT0}, {sRB2}, 288\ns_add_u32 {sAo}, {sAo}, {sT0}\ns_lshl_b32 {sAo}, {sAo}, 10")
def p2lane(g):
    g.e(f"v_lshrrev_b32 v{vD+1}, 3, v1\nv_and_b32 v{vD+2}, 7, v1\nv_bfe_u32 v{vD+3}, v1, 4, 1\nv_lshlrev_b32 v{vD+3}, 2, v{vD+3}\nv_xor_b32 v{vD+2}, v{vD+2}, v{vD+3}\nv_lshlrev_b32 v{vD+1}, 10, v{vD+1}\nv_lshl_add_u32 v{vD}, v{vD+2}, 4, v{vD+1}")

def counter_flag(g, idx, val, lab):
    e = g.e
    e(f"v_mov_b32 v9, {CNT+4*idx}\nv_mov_b32 v10, 1\ns_mov_b64 exec, 1")
    e(f"ds_add_rtn_u32 v10, v9, v10\ns_waitcnt lgkmcnt(0)\nv_readfirstlane_b32 {sT0}, v10")
    e(f"s_cmp_lg_u32 {sT0}, 7\ns_cbranch_scc1 {lab}")
    e(f"s_mov_b64 exec, 0xffff\ns_lshl_b32 {sT0}, {sRB}, {4+FLS}\ns_add_u32 {sT0}, {sT0}, {sCB}\ns_add_u32 {sT0}, {sT0}, {WS_FLG}\nv_lshlrev_b32 v9, {FLS}, v1\nv_mov_b32 v10, {val}")
    e(f"buffer_store_byte v10, v9, {sr(S_WS,4)}, {sT0} offen sc0 sc1")
    g.lab(lab)
    e("s_mov_b64 exec, -1")

def rest(g):
    A = g.A; e = g.e; put = g.put
    g.lab("ATT")
    A.lds_q = []; A.vm_q = ["hs"] * 5
    e("s_barrier")
    g.st(6)
    PK = 128; WF = 24; AR = 192; AC2 = 64
    e("""v_lshrrev_b32 v9, 5, v1
v_bfe_u32 v10, v1, 4, 1
v_bfe_u32 v11, v1, 2, 2
v_bfe_u32 v12, v1, 1, 1
v_and_b32 v13, 1, v1
v_lshl_add_u32 v14, v9, 2, v11
v_lshlrev_b32 v14, 7, v14
v_lshl_add_u32 v15, v10, 1, v12
v_lshrrev_b32 v11, 1, v11
v_lshl_add_u32 v15, v11, 2, v15
v_lshl_add_u32 v14, v15, 4, v14
v_lshl_add_u32 v14, v13, 3, v14""")
    e(f"v_add_u32 v16, {sT2}, v14\nv_xor_b32 v17, 64, v16\nv_add_u32 v18, 0x10000, v16\nv_add_u32 v19, 0x10000, v17\nv_add_u32 v20, {AREA[7]}, v16\nv_add_u32 v21, {AREA[7]}, v17")
    def trs(j, buf, tag):
        a = AMAP[j % 8]
        base, off = (20, 0) if a == 7 else ((16, AREA[a]) if a < 4 else (18, AREA[a] - 0x10000))
        return [("ds", f"ds_read_b64_tr_b16 {vr(buf+4*cbk+2*h,2)}, v{base+cbk} offset:{off+1024*h}", tag) for cbk in range(2) for h in range(2)]
    for j in range(8): put(trs(j, PK + 8 * j, "pk"))
    e(f"s_lshl_b32 {sT3}, {sRG}, 5\nv_and_b32 v22, 31, v1\nv_add_u32 v22, {sT3}, v22\nv_add_u32 v23, 2, v22\nv_mul_u32_u24 v23, {QS}, v23\nv_lshl_add_u32 v23, v9, 4, v23")
    e(f"s_lshr_b32 {sT1}, {sW}, 2\ns_lshl_b32 {sT3}, {sT1}, 5\ns_add_u32 {sT3}, {sT3}, {QKV}\nv_add_u32 v23, {sT3}, v23")
    Q = 24; K = 28; V = 64; Lg = 96; P = 104; O = 120
    A.ds(f"ds_read_b128 {vr(Q,4)}, v23 offset:{14*QS}", "q")
    for w in range(8): A.ds(f"ds_read_b128 {vr(K+4*w,4)}, v23 offset:{(14-2*w)*QS+64}", ("k", w))
    A.wait(lds=["pk"])
    def w2(j, cond=None):
        ops = []
        so = sW2o
        if cond is not None:
            ops.append(f"s_cmp_gt_u32 {sN}, {cond}\ns_cselect_b32 {sT0}, {sW2o}, 0\ns_cselect_b32 {sT1}, 8192, 0"); so = sT0
        for h in range(2):
            ops += [f"s_add_u32 m0, {sT2}, {AREA[AMAP[j%8]]+1024*h}", ("vm", f"buffer_load_dwordx4 v{vD}, {sr(S_W2,4)}, {so} offen lds", ("w2", j))]
            if cond is not None and h == 0: ops.append(f"s_add_u32 {sT0}, {sT0}, {sT1}")
            ops.append(f"s_add_u32 {sW2o}, {sW2o}, 8192")
        return ops
    for w in range(8):
        put(w2(8 + w))
        A.wait(lds=["q", ("k", w)])
        A.ds(f"ds_read_b128 {vr(V+4*w,4)}, v23 offset:{(14-2*w)*QS+128}", ("v", w))
        for i in range(4):
            e(f"v_dot2_f32_bf16 v{Lg+w}, v{Q+i}, v{K+4*w+i}, {'0' if i == 0 else f'v{Lg+w}'}")
    for p in range(4): e(f"v_permlane32_swap_b32 v{Lg+2*p}, v{Lg+2*p+1}")
    for p in range(4): e(f"v_add_f32 v{Lg+p}, v{Lg+2*p}, v{Lg+2*p+1}") if p else e(f"v_add_f32 v{Lg}, v{Lg}, v{Lg+1}")
    for p in range(2): e(f"v_cvt_pk_bf16_f32 v{Lg+4+p}, v{Lg+2*p}, v{Lg+2*p+1}")
    for p in range(2): e(f"v_lshlrev_b32 v{Lg+2*p}, 16, v{Lg+4+p}\nv_and_b32 v{Lg+2*p+1}, 0xffff0000, v{Lg+4+p}")
    e(f"s_cmp_lg_u32 {sRB}, 0\ns_cbranch_scc1 NOMASK")
    e(f"v_mov_b32 v10, 0xf149f2ca\nv_lshlrev_b32 v11, 1, v9\nv_sub_u32 v11, v22, v11")
    for p in range(4):
        e(f"v_cmp_gt_i32 vcc, {4*p}, v11\nv_cndmask_b32 v{Lg+p}, v{Lg+p}, v10, vcc")
    e("s_nop 3")
    g.lab("NOMASK")
    e("s_nop 3")
    e(f"v_max3_f32 v10, v{Lg}, v{Lg+1}, v{Lg+2}\nv_max_f32 v10, v10, v{Lg+3}\nv_mov_b32 v11, v10\nv_permlane32_swap_b32 v10, v11\nv_max_f32 v10, v10, v11")
    e("v_mov_b32 v11, 0x3eb8aa3b")
    for p in range(4): e(f"v_sub_f32 v{Lg+p}, v{Lg+p}, v10")
    for p in range(4): e(f"v_mul_f32 v{Lg+p}, v11, v{Lg+p}")
    for p in range(4): e(f"v_exp_f32 v{Lg+p}, v{Lg+p}")
    e(f"v_add_f32 v10, v{Lg}, v{Lg+1}\nv_add_f32 v11, v{Lg+2}, v{Lg+3}\nv_add_f32 v10, v10, v11\nv_mov_b32 v11, v10\nv_permlane32_swap_b32 v10, v11\nv_add_f32 v10, v10, v11\nv_rcp_f32 v10, v10")
    for p in range(4): e(f"v_mul_f32 v{Lg+p}, v10, v{Lg+p}")
    for p in range(4): e(f"v_cvt_pk_bf16_f32 v{P+4*p}, v{Lg+p}, 0")
    for p in range(4): e(f"v_mov_b32 v{P+4*p+2}, v{P+4*p}")
    for p in range(4): e(f"v_permlane32_swap_b32 v{P+4*p}, v{P+4*p+2}")
    for w in range(8): e(f"v_lshlrev_b32 v{P+2*w+1}, 16, v{P+2*w}")
    A.wait(vm=["hs"])
    A.wait(lds_all=True)
    counter_flag(g, 0, 3, "NOF2")
    A.vm_q.append("f2")
    g.st(7)
    for w in range(8):
        for i in range(4):
            for h in range(2):
                e(f"v_dot2_f32_bf16 v{O+2*i+h}, v{V+4*w+i}, v{P+2*w+h}, {'0' if w == 0 else f'v{O+2*i+h}'}")
    for i in range(4): e(f"v_cvt_pk_bf16_f32 v{Q+i}, v{O+2*i}, v{O+2*i+1}")
    e(f"s_lshl_b32 {sT0}, {sRB}, 2\ns_add_u32 {sT0}, {sT0}, {sRG}\ns_mul_i32 {sT0}, {sT0}, 144\ns_lshl_b32 {sT3}, {sCB}, 1\ns_add_u32 {sT0}, {sT0}, {sT3}\ns_lshr_b32 {sT1}, {sW}, 2\ns_add_u32 {sT0}, {sT0}, {sT1}\ns_lshl_b32 {sT0}, {sT0}, 10")
    A.vm(f"buffer_store_dwordx4 {vr(Q,4)}, v8, {sr(S_WS,4)}, {sT0} offen {STM}", "os")
    g.srd(S_A, 18, 2048 * 1024)
    e(f"s_lshr_b32 {sT0}, {sW}, 2\ns_lshl_b32 {sT1}, {sRB2}, 1\ns_add_u32 {sT1}, {sT1}, {sT0}\ns_lshl_b32 {sT1}, {sT1}, 15\ns_and_b32 {sT0}, {sW}, 3\ns_lshl_b32 {sT0}, {sT0}, 5\ns_add_u32 {sT1}, {sT1}, {sT0}\ns_lshl_b32 {sT0}, {sCB2}, 7\ns_add_u32 {sSLOT}, {sT1}, {sT0}")
    e("v_and_b32 v10, 31, v1\nv_lshlrev_b32 v10, 10, v10\nv_lshrrev_b32 v9, 5, v1\nv_lshl_add_u32 v22, v9, 3, v10\nv_lshl_add_u32 v23, v9, 4, v10")
    XR = 56
    for q in range(2): A.vm(f"buffer_load_dwordx2 {vr(XR+2*q,2)}, v22, {sr(S_X,4)}, {sSLOT} offen offset:{16*q}", "x")
    e(f"v_add_u32 v15, {144*1024}, v8")
    for i in range(64): e(f"v_mov_b32 v{AC2+i}, 0")
    A.wait(vm=["os"])
    counter_flag(g, 1, 7, "NOF3")
    g.st(8)
    e(f"s_lshl_b32 {sT0}, {sRB2}, 3\ns_add_u32 {sT0}, {sT0}, {sCB2}\ns_lshl_b32 {sT0}, {sT0}, {FLS}\ns_add_u32 {sT0}, {sT0}, {WS_FLG}\nv_mov_b32 v9, 0\ns_mov_b32 {sT1}, 0\nv_mov_b32 v14, {CNT+8}")
    e(f"s_cmp_lg_u32 {sW}, 7\ns_cbranch_scc1 LSPIN")
    g.lab("POLL")
    e(f"buffer_load_dwordx4 v[10:13], v9, {sr(S_WS,4)}, {sT0} offen sc0 sc1\ns_waitcnt vmcnt(0)")
    e(f"v_and_b32 v10, v10, v11\nv_and_b32 v12, v12, v13\nv_and_b32 v10, v10, v12\ns_nop 1\nv_readfirstlane_b32 {sT3}, v10")
    e(f"ds_write_b32 v14, v10")
    e(f"s_add_u32 {sT1}, {sT1}, 1\ns_cmp_gt_u32 {sT1}, 100000\ns_cbranch_scc1 POLLD")
    e(f"s_and_b32 {sT3}, {sT3}, {sMSK}\ns_cmp_eq_u32 {sT3}, {sMSK}\ns_cbranch_scc1 POLLD\ns_sleep {opt('PSL', 4)}\ns_branch POLL")
    g.lab("LSPIN")
    e(f"ds_read_b32 v10, v14\ns_waitcnt lgkmcnt(0)\nv_readfirstlane_b32 {sT3}, v10")
    e(f"s_add_u32 {sT1}, {sT1}, 1\ns_cmp_gt_u32 {sT1}, 1000000\ns_cbranch_scc1 POLLE")
    e(f"s_and_b32 {sT3}, {sT3}, {sMSK}\ns_cmp_eq_u32 {sT3}, {sMSK}\ns_cbranch_scc1 POLLE\ns_sleep 1\ns_branch LSPIN")
    g.lab("POLLE")
    e("s_waitcnt vmcnt(0)")
    g.lab("POLLD")
    A.vm_q = []
    g.st(9)
    def aload(s):
        ops = []
        so = sAo
        if s >= 16:
            ops.append(f"s_cmp_gt_u32 {sN}, {s}\ns_cselect_b32 {sT3}, {sAo}, {WS_DUMMY}"); so = sT3
        for h in range(2):
            ops.append(("vm", f"buffer_load_dwordx4 {vr(AR+8*(s%8)+4*h,4)}, v{8 if h == 0 else 15}, {sr(S_WS,4)}, {so} offen offset:{1024*(s%4)}", ("a", s)))
        if s % 4 == 3: ops.append(f"s_add_u32 {sAo}, {sAo}, 4096")
        return ops
    for s in range(8): put(aload(s))
    for s in range(20):
        if 8 <= s + 1 < 20:
            if s + 1 >= 16: A.wait(vm=[("w2", s + 1)])
            put(trs(s + 1, WF + 8 * ((s + 1) % 2), ("f", s + 1)))
        buf = PK + 8 * s if s < 8 else WF + 8 * (s % 2)
        A.wait(vm=[("a", s)], lds=[("f", s)])
        if 8 <= s < 12: put(w2(s + 8, cond=s + 8))
        for k in range(4):
            e(f"v_mfma_f32_32x32x16_bf16 {vr(AC2+16*k,16)}, {vr(buf+4*(k&1),4)}, {vr(AR+8*(s%8)+4*(k>>1),4)}, {vr(AC2+16*k,16)}")
        if s + 8 < 20: put(aload(s + 8))
        if s in (15, 17): e(f"s_cmp_eq_u32 {sN}, {s+1}\ns_cbranch_scc1 RED")
    g.lab("RED")
    g.st(10)
    e("s_waitcnt vmcnt(0) lgkmcnt(0)\ns_nop 7\ns_nop 7")
    A.vm_q = []; A.lds_q = []
    e(f"v_add_u32 v16, {sT2}, v8\nv_add_u32 v18, 0x10000, v16\nv_add_u32 v20, {AREA[7]}, v16")
    for d in range(8):
        base, off = (20, 0) if d == 7 else ((16, AREA[d]) if d < 4 else (18, AREA[d] - 0x10000))
        for h in range(2):
            A.ds(f"ds_write_b128 v{base}, {vr(AC2+8*d+4*h,4)} offset:{off+1024*h}", "pw")
    e(f"s_lshl_b32 {sT0}, {sW}, 14\ns_cmp_eq_u32 {sW}, 7\ns_cselect_b32 {sT0}, {AREA[7]}, {sT0}\nv_add_u32 v16, {sT0}, v8")
    A.wait(lds_all=True)
    e("s_barrier")
    R = 128
    for s in range(8):
        for h in range(2): A.ds(f"ds_read_b128 {vr(R+8*s+4*h,4)}, v16 offset:{2048*s+1024*h}", ("r", s))
    Oo = R; S = R + 48; Tm = 64; Gt = 80
    for s in (1, 2, 3, 4, 5):
        A.wait(lds=[("r", s)])
        for i in range(4): e(f"v_pk_add_f32 {vr(Oo+2*i,2)}, {vr(Oo+2*i,2)}, {vr(R+8*s+2*i,2)}")
    A.wait(lds=[("r", 7)])
    for i in range(4): e(f"v_pk_add_f32 {vr(S+2*i,2)}, {vr(S+2*i,2)}, {vr(R+56+2*i,2)}")
    def rnd8(b, tmp):
        for i in range(4): e(f"v_cvt_pk_bf16_f32 v{tmp+i}, v{b+2*i}, v{b+2*i+1}")
        for i in range(4): e(f"v_lshlrev_b32 v{b+2*i}, 16, v{tmp+i}\nv_and_b32 v{b+2*i+1}, 0xffff0000, v{tmp+i}")
    rnd8(Oo, Tm); rnd8(S, Tm + 4)
    for i in range(8): e(f"v_mul_f32 v{Gt+i}, 0xbfb8aa3b, v{Oo+i}")
    for i in range(8): e(f"v_exp_f32 v{Gt+i}, v{Gt+i}")
    for i in range(8): e(f"v_add_f32 v{Gt+i}, 1.0, v{Gt+i}")
    for i in range(8): e(f"v_rcp_f32 v{Gt+i}, v{Gt+i}")
    for i in range(8): e(f"v_mul_f32 v{Gt+i}, v{Gt+i}, v{Oo+i}")
    rnd8(Gt, Tm)
    for i in range(8): e(f"v_mul_f32 v{S+i}, v{S+i}, v{Gt+i}")
    rnd8(S, Tm)
    for i in range(4): e(f"v_lshlrev_b32 v{Oo+2*i}, 16, v{XR+i}\nv_and_b32 v{Oo+2*i+1}, 0xffff0000, v{XR+i}")
    for i in range(8): e(f"v_add_f32 v{S+i}, v{S+i}, v{Oo+i}")
    for i in range(4): e(f"v_cvt_pk_bf16_f32 v{Tm+i}, v{S+2*i}, v{S+2*i+1}")
    e(f"v_permlane32_swap_b32 v{Tm}, v{Tm+2}\nv_permlane32_swap_b32 v{Tm+1}, v{Tm+3}")
    e(f"buffer_store_dwordx4 {vr(Tm,4)}, v23, {sr(S_A,4)}, {sSLOT} offen")
    g.st(11)
    if STAMP:
        e(f"s_waitcnt lgkmcnt(0)\nv_mov_b32 v2, {33<<20}\ns_lshl_b32 s6, {sW}, 6\ns_lshl_b32 s7, s2, 9\ns_add_u32 s6, s6, s7")
        for i in range(g.ns):
            e(f"s_sub_u32 s7, s{76+2*i}, s76\nv_mov_b32 v1, s7\nbuffer_store_dword v1, v2, {sr(S_WS,4)}, s6 offen offset:{4*i}")
        g.lab("NOST")
    if TL:
        e(f"s_waitcnt vmcnt(0)\ns_cmp_lg_u32 {sW}, 0\ns_cbranch_scc1 END")
        e("s_memrealtime s[4:5]\ns_memtime s[6:7]\ns_waitcnt lgkmcnt(0)")
        e(f"s_lshl_b32 s14, s2, 5\ns_add_u32 s14, s14, {32<<20}")
        e("v_mov_b32 v2, 0\nv_mov_b32 v4, s100\nv_mov_b32 v5, s101\nv_mov_b32 v6, s76\nv_mov_b32 v7, s77\nv_mov_b32 v8, s4\nv_mov_b32 v9, s5\nv_mov_b32 v10, s6\nv_mov_b32 v11, s7")
        e(f"buffer_store_dwordx4 v[4:7], v2, {sr(S_WS,4)}, s14 offen\nbuffer_store_dwordx4 v[8:11], v2, {sr(S_WS,4)}, s14 offen offset:16")
    g.lab("END")
    e("s_endpgm")
    g.lab("CODE_END")

PREFSZ = opt("PREFSZ", 24 * 1024 - 128); PREFW = opt("PREFW", 2)
def main():
    g = G(); e = g.e
    e("s_cmp_ge_u32 s2, 256\ns_cbranch_scc1 END")
    e("s_load_dwordx16 s[4:19], s[0:1], 0\ns_load_dwordx4 s[20:23], s[0:1], 64")
    if TL: e("s_memrealtime s[100:101]" + ("" if STAMP else "\ns_memtime s[76:77]"))
    g.st(0)
    e("v_and_b32 v1, 63, v0\nv_lshrrev_b32 v2, 6, v0")
    e(f"v_readfirstlane_b32 {sW}, v2")
    e(f"s_and_b32 {sI}, s2, 7\ns_lshr_b32 {sJ}, s2, 3")
    e(f"s_lshr_b32 {sRB}, {sI}, 2\ns_lshl_b32 {sRB}, {sRB}, 3\ns_and_b32 {sT0}, {sJ}, 7\ns_add_u32 {sRB}, {sRB}, {sT0}")
    e(f"s_and_b32 {sCB}, {sI}, 3\ns_lshl_b32 {sCB}, {sCB}, 2\ns_lshr_b32 {sT0}, {sJ}, 3\ns_add_u32 {sCB}, {sCB}, {sT0}")
    e(f"s_and_b32 {sRG}, {sW}, 3\ns_lshr_b32 {sQ}, {sRB}, 2\ns_cmp_ge_u32 {sW}, 4\ns_cbranch_scc1 MSEL")
    helper_path(g)
    hook(g)
    g.lab("MSEL")
    if PREF:
        e("s_getpc_b64 s[72:73]")
        g.lab("PC")
        e(f"s_sub_u32 s72, s72, PC-{NAME}_kernel\ns_subb_u32 s73, s73, 0")
        e(f"v_and_b32 v18, 255, v0\nv_lshlrev_b32 v18, 7, v18\nv_min_u32 v18, CODE_END-{NAME}_kernel-4, v18")
        e("global_load_dword v19, v18, s[72:73]")
    e(f"s_bitcmp1_b32 {sW}, 0\ns_cbranch_scc1 MP1")
    g.A.vm_q = []; g.A.lds_q = []
    mfma_path(g, 0)
    g.lab("MP1")
    g.A.vm_q = []; g.A.lds_q = []
    e("s_nop 3")
    mfma_path(g, 1)
    rest(g)
    body = g.A.finish()
    nm = NAME + "_kernel"
    out = ["; generated by dev/gen4.py", f"; @launch grid=(256,1,1) block=(512,1,1) lds={LDS_TOTAL}",
           '.amdgcn_target "amdgcn-amd-amdhsa--gfx950"\n.text', f".globl {nm}\n.p2align 8\n.type {nm},@function\n{nm}:"]
    out += body
    out.append('.section .rodata,"a"\n.p2align 6')
    out.append(f""".amdhsa_kernel {nm}
  .amdhsa_next_free_vgpr 256
  .amdhsa_next_free_sgpr 102
  .amdhsa_accum_offset 256
  .amdhsa_group_segment_fixed_size 0
  .amdhsa_kernarg_size 80
  .amdhsa_user_sgpr_count 2
  .amdhsa_user_sgpr_kernarg_segment_ptr 1
  .amdhsa_system_sgpr_workgroup_id_x 1
.end_amdhsa_kernel
""")
    open(sys.argv[1], "w").write("\n".join(out) + "\n")
main()
```
